```python
import torch

def _softmax(x, axis=-1):
    return torch.softmax(x, dim=axis)
def _gelu(x):
    return torch.nn.functional.gelu(x, approximate="tanh")
def _silu(x):
    return torch.nn.functional.silu(x)
def _sigmoid(x):
    return torch.sigmoid(x)
def _layernorm(x, axis=-1, eps=1e-5):
    m = x.mean(dim=axis, keepdim=True)
    v = x.var(dim=axis, keepdim=True, unbiased=False)
    return (x - m) / torch.sqrt(v + eps)
def _scatter_add(tgt, idx, src, axis=0):
    return tgt.clone().index_add_(axis, idx, src)
def _segment_sum(src, seg, n):
    out = torch.zeros((n,) + src.shape[1:], dtype=src.dtype)
    return out.index_add_(0, seg, src)
def _pad(x, pw):
    flat = tuple(v for pair in reversed(pw) for v in pair)
    return torch.nn.functional.pad(x, flat)

kernel_name = 'gated_mix__compressed_kv_cla__grouped_kv_mqa__prompt'

def setup_inputs():

    _w = (lambda a: (lambda t: t.to(torch.bfloat16) if t.is_floating_point() else t)(torch.as_tensor(a)))
    def _A_setup():
        B, H, Sq, Sk, D, M = 1, 32, 2048, 2048, 128, 512
        Dc = 4 * D
        return {
            "x": _w((lambda *s: torch.randn(*s, dtype=torch.bfloat16) * 0.05)(B, Sq, M)),
            "c_kv": _w((lambda *s: torch.randn(*s, dtype=torch.bfloat16) * 0.8)(B, Sk, Dc)),
            "w_q": _w((lambda *s: torch.randn(*s, dtype=torch.bfloat16) * 6.4)(M, H, D) * (M ** -0.5)),
            "w_uk": _w((lambda *s: torch.randn(*s, dtype=torch.bfloat16) * 6.4)(Dc, H, D) * (Dc ** -0.5)),
            "w_uv": _w((lambda *s: torch.randn(*s, dtype=torch.bfloat16) * 0.8)(Dc, H, D) * (Dc ** -0.5)),
            "w_o": _w((lambda *s: torch.randn(*s, dtype=torch.bfloat16) * 0.8)(H, D, M) * ((H * D) ** -0.5)),
        }
    _A_in = _A_setup()

    def _B_setup():
        B, S, D, H = 1, 2048, 512, 32
        Dh = D // H
        return {
            "x": _w((lambda *s: torch.randn(*s, dtype=torch.bfloat16) * 0.05)(B, S, D)),
            "wq": _w((lambda *s: torch.randn(*s, dtype=torch.bfloat16) * 3.2)(D, H * Dh)),
            "wk": _w((lambda *s: torch.randn(*s, dtype=torch.bfloat16) * 3.2)(D, Dh)),
            "wv": _w((lambda *s: torch.randn(*s, dtype=torch.bfloat16) * 0.1)(D, Dh)),
            "wo": _w((lambda *s: torch.randn(*s, dtype=torch.bfloat16) * 0.1)(H * Dh, D)),
        }
    _B_in = _B_setup()

    return {
        "A_x": _A_in["x"],
        "A_c_kv": _A_in["c_kv"],
        "A_w_q": _A_in["w_q"],
        "A_w_uk": _A_in["w_uk"],
        "A_w_uv": _A_in["w_uv"],
        "A_w_o": _A_in["w_o"],
        "B_x": _B_in["x"],
        "B_wq": _B_in["wq"],
        "B_wk": _B_in["wk"],
        "B_wv": _B_in["wv"],
        "B_wo": _B_in["wo"],
        "gate_w": _w((lambda *s: torch.randn(*s, dtype=torch.bfloat16) * 0.05)(512) * 16.0),
    }

def reference(A_x, A_c_kv, A_w_q, A_w_uk, A_w_uv, A_w_o, B_x, B_wq, B_wk, B_wv, B_wo, gate_w):
    def _A_ref(x, c_kv, w_q, w_uk, w_uv, w_o):
        B, Sq, M = x.shape[0], x.shape[1], x.shape[2]
        Sk = c_kv.shape[1]
        H, D = w_q.shape[1], w_q.shape[2]
        q = torch.einsum("bqm,mhd->bhqd", x, w_q)
        k = torch.einsum("bkc,chd->bhkd", c_kv, w_uk)
        v = torch.einsum("bkc,chd->bhkd", c_kv, w_uv)
        scores = torch.einsum("bhqd,bhkd->bhqk", q, k) * (D ** -0.5)
        off = Sk - Sq
        qi = torch.arange(Sq)[:, None]
        kj = torch.arange(Sk)[None, :]
        cmask = kj <= (qi + off)
        scores = torch.where(cmask[None, None], scores, -1e9)
        p = _softmax(scores, axis=-1)
        ctx = torch.einsum("bhqk,bhkd->bhqd", p, v)
        return torch.einsum("bhqd,hdm->bqm", ctx, w_o)

    def _B_ref(x, wq, wk, wv, wo):
        B, S, D = x.shape
        H = 32
        Dh = D // H
        q = (lambda x, *d: x.permute(*d))((x @ wq).reshape(B, S, H, Dh), 0, 2, 1, 3)
        k = x @ wk
        v = x @ wv
        scores = torch.einsum("bhqd,bkd->bhqk", q, k) * (Dh ** -0.5)
        p = _softmax(scores, axis=-1)
        o = torch.einsum("bhqk,bkd->bhqd", p, v)
        return (lambda x, *d: x.permute(*d))(o, 0, 2, 1, 3).reshape(B, S, H * Dh) @ wo

    x = A_x
    g = _sigmoid((x * gate_w).sum(-1, keepdims=True))
    a = _A_ref(x, A_c_kv, A_w_q, A_w_uk, A_w_uv, A_w_o)
    b = _B_ref(x, B_wq, B_wk, B_wv, B_wo)
    return g * a + (1 - g) * b
```

```python
from asmlib import *

WS_QA, WS_KA, WS_VA, WS_CTX = 0x0000000, 0x1000000, 0x2000000, 0x3000000

A_LANE = 1
A_T = 2
A_Q = 10
A_O = 42
A_S = 106
A_P = 138
A_KF = 154
A_VF = 170
A_KRD = 186
A_VRD = 194
A_KOFF = 198
A_VOFF = 199
A_M, A_L = 200, 201
A_REL = 202
A_NEG = 203
A_TM = 204
A_OUT = 212
A_NVGPR = 216

AS_SRD = 4
AS_W = 8
AS_H, AS_T = 9, 10
AS_KCUR, AS_VCUR = 11, 12
AS_LDSK, AS_LDSV = 13, 14
AS_J, AS_NT = 15, 16
AS_TILEBASE = 17
AS_TMP = 20
AS_THR = 28

STAGE = 32768
VOFF_ST = 16384


def O(db):
    return A_O + 16 * db


def S(sub):
    return A_S + 16 * sub


def a_setup(a, ws_sgpr):
    a.srd(AS_SRD, "s%d" % ws_sgpr, "s%d" % (ws_sgpr + 1), 0x4000000)
    L, t = A_LANE, A_T
    a("v_and_b32 v%d, 63, v0" % L)
    a("v_lshrrev_b32 v%d, 6, v0" % t)
    a("s_nop 0")
    a("v_readfirstlane_b32 s%d, v%d" % (AS_W, t))
    a("s_nop 3")
    a("s_lshl_b32 s%d, s%d, 12" % (AS_LDSK, AS_W))
    a("s_add_u32 s%d, s%d, %d" % (AS_LDSV, AS_LDSK, VOFF_ST))
    a("v_lshrrev_b32 v%d, 4, v%d" % (t, L))
    a("v_and_b32 v%d, 15, v%d" % (t + 1, L))
    a("v_xor_b32 v%d, v%d, v%d" % (t + 2, t + 1, t))
    a("v_lshlrev_b32 v%d, 4, v%d" % (t + 2, t + 2))
    a("v_lshlrev_b32 v%d, 8, v%d" % (t + 3, t))
    a("v_add_u32 v%d, v%d, v%d" % (A_KOFF, t + 2, t + 3))
    a("v_lshlrev_b32 v%d, 2, v%d" % (t + 2, t))
    a("v_xor_b32 v%d, v%d, v%d" % (t + 2, t + 1, t + 2))
    a("v_lshlrev_b32 v%d, 4, v%d" % (t + 2, t + 2))
    a("v_add_u32 v%d, v%d, v%d" % (A_VOFF, t + 2, t + 3))
    a("v_and_b32 v%d, 31, v%d" % (t + 2, L))
    a("v_lshlrev_b32 v%d, 8, v%d" % (t + 2, t + 2))
    a("v_lshrrev_b32 v%d, 5, v%d" % (t + 3, L))
    a("v_xor_b32 v%d, v%d, v%d" % (t + 4, t + 3, t + 1))
    a("v_lshlrev_b32 v%d, 4, v%d" % (t + 4, t + 4))
    a("v_add_u32 v%d, v%d, v%d" % (A_KRD, t + 2, t + 4))
    for s in range(1, 8):
        a("v_xor_b32 v%d, %d, v%d" % (A_KRD + s, 32 * s, A_KRD))
    a("v_bfe_u32 v%d, v%d, 4, 1" % (t + 4, L))
    a("v_bfe_u32 v%d, v%d, 2, 2" % (t + 5, L))
    a("v_and_b32 v%d, 3, v%d" % (t + 6, L))
    a("v_lshlrev_b32 v%d, 2, v%d" % (t + 7, t + 3))
    a("v_add_u32 v%d, v%d, v%d" % (t + 7, t + 7, t + 5))
    a("v_lshlrev_b32 v%d, 8, v%d" % (t + 7, t + 7))
    a("v_and_b32 v%d, 1, v%d" % (t + 2, t + 6))
    a("v_lshlrev_b32 v%d, 3, v%d" % (t + 2, t + 2))
    a("v_add_u32 v%d, v%d, v%d" % (t + 7, t + 7, t + 2))
    a("v_lshrrev_b32 v%d, 1, v%d" % (t + 6, t + 6))
    a("v_lshlrev_b32 v%d, 1, v%d" % (t + 4, t + 4))
    a("v_add_u32 v%d, v%d, v%d" % (t + 6, t + 6, t + 4))
    a("v_lshlrev_b32 v%d, 2, v%d" % (t + 5, t + 5))
    for db in range(4):
        a("v_add_u32 v%d, %d, v%d" % (t + 2, 4 * db, t + 6))
        a("v_xor_b32 v%d, v%d, v%d" % (t + 2, t + 2, t + 5))
        a("v_lshlrev_b32 v%d, 4, v%d" % (t + 2, t + 2))
        a("v_add_u32 v%d, v%d, v%d" % (A_VRD + db, t + 7, t + 2))
    a("v_mov_b32 v%d, 0xff800000" % A_NEG)
    a("s_mov_b32 s%d, 0x41000000" % AS_THR)


def a_issue_dma(a, stage):
    base = stage * STAGE
    for i in range(4):
        a("s_add_u32 m0, s%d, %d" % (AS_LDSK, base + i * 1024))
        a("v_xor_b32 v%d, %d, v%d" % (A_T, 64 * i, A_KOFF))
        a("buffer_load_dwordx4 v%d, s[%d:%d], s%d offen offset:%d lds" % (A_T, AS_SRD, AS_SRD + 3, AS_KCUR, 0))
        a("s_add_u32 s%d, s%d, 1024" % (AS_KCUR, AS_KCUR))
    for i in range(4):
        a("s_add_u32 m0, s%d, %d" % (AS_LDSV, base + i * 1024))
        a("s_nop 0")
        a("buffer_load_dwordx4 v%d, s[%d:%d], s%d offen lds" % (A_VOFF, AS_SRD, AS_SRD + 3, AS_VCUR))
        a("s_add_u32 s%d, s%d, 1024" % (AS_VCUR, AS_VCUR))
    a("s_add_u32 s%d, s%d, %d" % (AS_KCUR, AS_KCUR, 16384 - 4096))
    a("s_add_u32 s%d, s%d, %d" % (AS_VCUR, AS_VCUR, 16384 - 4096))


def a_tile(a, stage, masked, prefix):
    base = stage * STAGE
    seq = [(sub, s) for sub in range(2) for s in range(8)]

    def kread(idx):
        sub, s = seq[idx]
        a("ds_read_b128 %s, v%d offset:%d" % (vr(A_KF + 4 * (idx % 4), 4), A_KRD + s, base + sub * 8192))

    for idx in range(3):
        kread(idx)
    for idx, (sub, s) in enumerate(seq):
        if idx + 3 < len(seq):
            kread(idx + 3)
            a.wait(lgkm=3)
        else:
            a.wait(lgkm=len(seq) - 1 - idx)
        c = "0" if s == 0 else vr(S(sub), 16)
        a("v_mfma_f32_32x32x16_bf16 %s, %s, %s, %s" % (vr(S(sub), 16), vr(A_KF + 4 * (idx % 4), 4), vr(A_Q + 4 * s, 4), c))
    vseq = [(db, ks) for db in range(4) for ks in range(4)]

    def vread(idx):
        db, ks = vseq[idx]
        for t in range(2):
            a("ds_read_b64_tr_b16 %s, v%d offset:%d"
              % (vr(A_VF + 4 * (idx % 4) + 2 * t, 2), A_VRD + db, base + VOFF_ST + (16 * ks + 8 * t) * 256))

    for idx in range(3):
        vread(idx)
    a.nop(12)
    regs = [S(sub) + i for sub in range(2) for i in range(16)]
    if masked:
        for sub in range(2):
            for i in range(16):
                kk = 32 * sub + 8 * (i // 4) + (i % 4)
                a("v_cmp_lt_i32 vcc, v%d, %d" % (A_REL, kk))
                a("s_nop 1")
                a("v_cndmask_b32 v%d, v%d, v%d, vcc" % (S(sub) + i, S(sub) + i, A_NEG))
    tm = A_TM
    a("v_max3_f32 v%d, v%d, v%d, v%d" % (tm, regs[0], regs[1], regs[2]))
    a("v_max3_f32 v%d, v%d, v%d, v%d" % (tm + 1, regs[3], regs[4], regs[5]))
    idx, k = 6, 0
    while idx + 1 < 32:
        d = tm + (k % 2)
        a("v_max3_f32 v%d, v%d, v%d, v%d" % (d, d, regs[idx], regs[idx + 1]))
        idx += 2
        k += 1
    a("v_max_f32 v%d, v%d, v%d" % (tm, tm, tm + 1))
    a("v_mov_b32 v%d, v%d" % (tm + 1, tm))
    a("s_nop 1")
    a("v_permlane32_swap_b32 v%d, v%d" % (tm, tm + 1))
    a("v_max_f32 v%d, v%d, v%d" % (tm, tm, tm + 1))
    a("v_sub_f32 v%d, v%d, v%d" % (tm + 1, tm, A_M))
    a("v_cmp_gt_f32 vcc, v%d, s%d" % (tm + 1, AS_THR))
    lbl = a.uid(prefix + "_nors")
    a("s_cbranch_vccz %s" % lbl)
    a("v_max_f32 v%d, v%d, v%d" % (tm, tm, A_M))
    a("v_sub_f32 v%d, v%d, v%d" % (tm + 1, A_M, tm))
    a("v_exp_f32 v%d, v%d" % (tm + 1, tm + 1))
    a("v_mov_b32 v%d, v%d" % (A_M, tm))
    a("v_mul_f32 v%d, v%d, v%d" % (A_L, tm + 1, A_L))
    for i in range(64):
        a("v_mul_f32 v%d, v%d, v%d" % (A_O + i, tm + 1, A_O + i))
    a.label(lbl)
    for r in regs:
        a("v_sub_f32 v%d, v%d, v%d" % (r, r, A_M))
    for r in regs:
        a("v_exp_f32 v%d, v%d" % (r, r))
    a("v_add_f32 v%d, v%d, v%d" % (tm, regs[0], regs[1]))
    a("v_add_f32 v%d, v%d, v%d" % (tm + 1, regs[2], regs[3]))
    for j in range(4, 32, 2):
        a("v_add_f32 v%d, v%d, v%d" % (tm, tm, regs[j]))
        a("v_add_f32 v%d, v%d, v%d" % (tm + 1, tm + 1, regs[j + 1]))
    for sub in range(2):
        for j in range(8):
            a("v_cvt_pk_bf16_f32 v%d, v%d, v%d" % (A_P + 8 * sub + j, S(sub) + 2 * j, S(sub) + 2 * j + 1))
    a("v_add_f32 v%d, v%d, v%d" % (tm, tm, tm + 1))
    a("v_add_f32 v%d, v%d, v%d" % (A_L, A_L, tm))
    for idx, (db, ks) in enumerate(vseq):
        if idx + 3 < len(vseq):
            vread(idx + 3)
            a.wait(lgkm=6)
        else:
            a.wait(lgkm=2 * (len(vseq) - 1 - idx))
        a("v_mfma_f32_32x32x16_bf16 %s, %s, %s, %s"
          % (vr(O(db), 16), vr(A_VF + 4 * (idx % 4), 4), vr(A_P + 4 * ks, 4), vr(O(db), 16)))


def gen_aattn_role(a, prefix, ws_sgpr, head_sgpr, t_sgpr):
    a.c("A-attention role")
    a("s_mov_b32 s%d, s%d" % (AS_H, head_sgpr))
    a("s_mov_b32 s%d, s%d" % (AS_T, t_sgpr))
    a_setup(a, ws_sgpr)
    T = AS_TMP
    a("s_lshl_b32 s%d, s%d, 19" % (T, AS_H))
    a("s_lshl_b32 s%d, s%d, 7" % (T + 1, AS_T))
    a("s_lshl_b32 s%d, s%d, 5" % (T + 2, AS_W))
    a("s_add_u32 s%d, s%d, s%d" % (T + 1, T + 1, T + 2))
    a("s_lshl_b32 s%d, s%d, 8" % (T + 3, T + 1))
    a("s_add_u32 s%d, s%d, s%d" % (T + 3, T + 3, T))
    a("v_and_b32 v%d, 31, v%d" % (A_T, A_LANE))
    a("v_lshlrev_b32 v%d, 8, v%d" % (A_T + 1, A_T))
    a("v_lshrrev_b32 v%d, 5, v%d" % (A_T + 2, A_LANE))
    a("v_lshlrev_b32 v%d, 4, v%d" % (A_T + 3, A_T + 2))
    a("v_add_u32 v%d, v%d, v%d" % (A_T + 1, A_T + 1, A_T + 3))
    for s in range(8):
        a("buffer_load_dwordx4 %s, v%d, s[%d:%d], s%d offen offset:%d" % (vr(A_Q + 4 * s, 4), A_T + 1, AS_SRD, AS_SRD + 3, T + 3, 32 * s))
    a("v_add_u32 v%d, s%d, v%d" % (A_REL, T + 1, A_T))
    a("v_lshlrev_b32 v%d, 2, v%d" % (A_T + 3, A_T + 2))
    a("v_sub_u32 v%d, v%d, v%d" % (A_REL, A_REL, A_T + 3))
    a("s_lshl_b32 s%d, s%d, 12" % (T + 4, AS_W))
    a("s_add_u32 s%d, s%d, s%d" % (T + 4, T + 4, T))
    a("s_add_u32 s%d, s%d, 0x%x" % (AS_KCUR, T + 4, WS_KA))
    a("s_add_u32 s%d, s%d, 0x%x" % (AS_VCUR, T + 4, WS_VA))
    a_issue_dma(a, 0)
    a("v_mov_b32 v%d, 0xff800000" % A_M)
    a("v_mov_b32 v%d, 0" % A_L)
    for i in range(64):
        a("v_mov_b32 v%d, 0" % (A_O + i))
    a("s_lshl_b32 s%d, s%d, 1" % (AS_NT, AS_T))
    a("s_mov_b32 s%d, 0" % AS_J)
    lp, lm, done = prefix + "_aloop", prefix + "_amask", prefix + "_adone"
    a("s_cmp_ge_u32 s%d, s%d" % (AS_J, AS_NT))
    a("s_cbranch_scc1 %s" % lm)
    a.label(lp)
    for st in range(2):
        a.wait(vm=0)
        a("s_barrier")
        a_issue_dma(a, 1 - st)
        a_tile(a, st, False, prefix)
    a("s_add_u32 s%d, s%d, 2" % (AS_J, AS_J))
    a("s_cmp_lt_u32 s%d, s%d" % (AS_J, AS_NT))
    a("s_cbranch_scc1 %s" % lp)
    a.label(lm)
    a("s_lshl_b32 s%d, s%d, 7" % (AS_TILEBASE, AS_T))
    a("v_subrev_u32 v%d, s%d, v%d" % (A_REL, AS_TILEBASE, A_REL))
    for st in range(2):
        a.wait(vm=0)
        a("s_barrier")
        if st == 0:
            a_issue_dma(a, 1)
        a_tile(a, st, True, prefix)
        if st == 0:
            a("v_subrev_u32 v%d, 64, v%d" % (A_REL, A_REL))
    a.nop(20)
    tm = A_TM
    a("v_mov_b32 v%d, v%d" % (tm, A_L))
    a("v_mov_b32 v%d, v%d" % (tm + 1, A_L))
    a("s_nop 1")
    a("v_permlane32_swap_b32 v%d, v%d" % (tm, tm + 1))
    a("v_add_f32 v%d, v%d, v%d" % (tm, tm, tm + 1))
    a("v_rcp_f32 v%d, v%d" % (tm, tm))
    a("v_and_b32 v%d, 31, v%d" % (A_T, A_LANE))
    a("v_lshlrev_b32 v%d, 13, v%d" % (A_T + 1, A_T))
    a("v_lshrrev_b32 v%d, 5, v%d" % (A_T + 2, A_LANE))
    a("v_lshlrev_b32 v%d, 4, v%d" % (A_T + 2, A_T + 2))
    a("v_add_u32 v%d, v%d, v%d" % (A_OUT, A_T + 1, A_T + 2))
    a("s_lshl_b32 s%d, s%d, 7" % (T + 1, AS_T))
    a("s_lshl_b32 s%d, s%d, 5" % (T + 2, AS_W))
    a("s_add_u32 s%d, s%d, s%d" % (T + 1, T + 1, T + 2))
    a("s_lshl_b32 s%d, s%d, 13" % (T + 1, T + 1))
    a("s_lshl_b32 s%d, s%d, 8" % (T + 2, AS_H))
    a("s_add_u32 s%d, s%d, s%d" % (T + 1, T + 1, T + 2))
    a("s_add_u32 s%d, s%d, 0x%x" % (T + 1, T + 1, WS_CTX))
    k = 0
    for db in range(4):
        for pr in range(2):
            r = O(db) + 8 * pr
            t0 = A_S + 4 * (k % 2)
            k += 1
            for j in range(8):
                a("v_mul_f32 v%d, v%d, v%d" % (r + j, tm, r + j))
            a("v_cvt_pk_bf16_f32 v%d, v%d, v%d" % (t0, r, r + 1))
            a("v_cvt_pk_bf16_f32 v%d, v%d, v%d" % (t0 + 1, r + 2, r + 3))
            a("v_cvt_pk_bf16_f32 v%d, v%d, v%d" % (t0 + 2, r + 4, r + 5))
            a("v_cvt_pk_bf16_f32 v%d, v%d, v%d" % (t0 + 3, r + 6, r + 7))
            a("s_nop 1")
            a("v_permlane32_swap_b32 v%d, v%d" % (t0, t0 + 2))
            a("v_permlane32_swap_b32 v%d, v%d" % (t0 + 1, t0 + 3))
            a("buffer_store_dwordx4 %s, v%d, s[%d:%d], s%d offen offset:%d"
              % (vr(t0, 4), A_OUT, AS_SRD, AS_SRD + 3, T + 1, 64 * db + 32 * pr))
    a("s_waitcnt vmcnt(0)")
```

```python
class Asm:
    def __init__(self):
        self.L = []
        self._uid = 0

    def __call__(self, s):
        self.L.append("  " + s)

    def raw(self, s):
        self.L.append(s)

    def label(self, n):
        self.L.append(n + ":")

    def c(self, s):
        self.L.append("  ; " + s)

    def uid(self, p="L"):
        self._uid += 1
        return "%s_%d" % (p, self._uid)

    def text(self):
        return "\n".join(self.L) + "\n"

    def srd(self, d, lo, hi, nbytes):
        self("s_mov_b32 s%d, %s" % (d, lo))
        self("s_mov_b32 s%d, %s" % (d + 1, hi))
        if isinstance(nbytes, int):
            self("s_mov_b32 s%d, 0x%x" % (d + 2, nbytes))
        else:
            self("s_mov_b32 s%d, %s" % (d + 2, nbytes))
        self("s_mov_b32 s%d, 0x20000" % (d + 3))

    def wait(self, vm=None, lgkm=None):
        parts = []
        if vm is not None:
            parts.append("vmcnt(%d)" % vm)
        if lgkm is not None:
            parts.append("lgkmcnt(%d)" % lgkm)
        self("s_waitcnt " + " ".join(parts))

    def nop(self, n):
        while n > 0:
            k = min(n, 16)
            self("s_nop %d" % (k - 1))
            n -= k


def vr(a, n=None):
    if n is None:
        return "v%d" % a
    return "v[%d:%d]" % (a, a + n - 1)


def sr(a, n=None):
    if n is None:
        return "s%d" % a
    return "s[%d:%d]" % (a, a + n - 1)


KD_FMT = """.section .rodata,"a"
.p2align 6
.amdhsa_kernel {name}
  .amdhsa_next_free_vgpr {nvgpr}
  .amdhsa_next_free_sgpr {nsgpr}
  .amdhsa_accum_offset {accum}
  .amdhsa_group_segment_fixed_size 0
  .amdhsa_kernarg_size 120
  .amdhsa_user_sgpr_count 2
  .amdhsa_user_sgpr_kernarg_segment_ptr 1
  .amdhsa_system_sgpr_workgroup_id_x 1
.end_amdhsa_kernel
"""


def kernel_head(name):
    return ".text\n.globl %s\n.p2align 8\n.type %s,@function\n%s:\n" % (name, name, name)


def kernel_desc(name, nvgpr=256, nsgpr=102):
    accum = (nvgpr + 3) // 4 * 4
    return KD_FMT.format(name=name, nvgpr=nvgpr, nsgpr=nsgpr, accum=accum)
```

```python
import math, struct
from asmlib import *


def f32bits(x):
    return struct.unpack("<I", struct.pack("<f", x))[0]


C_B = 0.25 * math.log2(math.e)

WS_QB = 0x4000000
WS_KB = 0x4200000
WS_VBF = 0x4210000
WS_OB = 0x4300000
WS_G = 0x4500000

B_LANE = 1
B_T = 2
B_QF = 10
B_KF = 18
B_VF = 34
B_S = 66
B_P = 130
B_O = 162
B_M = 194
B_BIAS = 196
B_TM = 200
B_KOFF, B_VOFF = 208, 209
B_NVGPR = 212

BS_SRD = 4
BS_KCUR, BS_VCUR = 8, 9
BS_CNT = 10
BS_C = 12
BS_ROW = 14
BS_T = 16


def S(rb, tile):
    return B_S + (rb * 2 + tile) * 16


def P(rb, tile):
    return B_P + (rb * 2 + tile) * 8


def O(rb):
    return B_O + rb * 16


def KF(buf, tile):
    return B_KF + (buf * 2 + tile) * 4


def VF(buf, tile, ks):
    return B_VF + ((buf * 2 + tile) * 2 + ks) * 4


def b_load_k(buf):
    L = []
    for tile in range(2):
        L.append("buffer_load_dwordx4 %s, v%d, s[%d:%d], s%d offen offset:%d"
                 % (vr(KF(buf, tile), 4), B_KOFF, BS_SRD, BS_SRD + 3, BS_KCUR, tile * 1024))
    L.append("s_add_u32 s%d, s%d, 2048" % (BS_KCUR, BS_KCUR))
    return L


def b_load_v(buf):
    L = []
    for tile in range(2):
        for ks in range(2):
            L.append("buffer_load_dwordx4 %s, v%d, s[%d:%d], s%d offen offset:%d"
                     % (vr(VF(buf, tile, ks), 4), B_VOFF, BS_SRD, BS_SRD + 3, BS_VCUR, (tile * 2 + ks) * 1024))
    L.append("s_add_u32 s%d, s%d, 4096" % (BS_VCUR, BS_VCUR))
    return L


def b_qk(rb, kbuf):
    return ["v_mfma_f32_32x32x16_bf16 %s, %s, %s, 0" % (vr(S(rb, tile), 16), vr(KF(kbuf, tile), 4), vr(B_QF + 4 * rb, 4))
            for tile in range(2)]


def b_pv(rb, vbuf):
    return ["v_mfma_f32_32x32x16_bf16 %s, %s, %s, %s"
            % (vr(O(rb), 16), vr(VF(vbuf, tile, ks), 4), vr(P(rb, tile) + 4 * ks, 4), vr(O(rb), 16))
            for tile in range(2) for ks in range(2)]


def b_softmax(rb, round_scores=True):
    L = []
    a = L.append
    tm = B_TM + 4 * rb
    regs = [S(rb, t) + i for t in range(2) for i in range(16)]
    if round_scores:
        for r in regs:
            a("v_cvt_pk_bf16_f32 v%d, 0, v%d" % (r, r))
    a("v_max3_f32 v%d, v%d, v%d, v%d" % (tm, regs[0], regs[1], regs[2]))
    a("v_max3_f32 v%d, v%d, v%d, v%d" % (tm + 1, regs[3], regs[4], regs[5]))
    idx, k = 6, 0
    while idx + 1 < 32:
        d = tm + (k % 2)
        a("v_max3_f32 v%d, v%d, v%d, v%d" % (d, d, regs[idx], regs[idx + 1]))
        idx += 2
        k += 1
    a("v_max3_f32 v%d, v%d, v%d, v%d" % (tm, tm, tm + 1, B_M + rb))
    a("v_mov_b32 v%d, v%d" % (tm + 1, tm))
    a("s_nop 1")
    a("v_permlane32_swap_b32 v%d, v%d" % (tm, tm + 1))
    a("v_max_f32 v%d, v%d, v%d" % (tm, tm, tm + 1))
    a("v_sub_f32 v%d, v%d, v%d" % (tm + 1, B_M + rb, tm))
    a("v_mul_f32 v%d, s%d, v%d" % (tm + 1, BS_C, tm + 1))
    a("v_exp_f32 v%d, v%d" % (tm + 1, tm + 1))
    a("v_mov_b32 v%d, v%d" % (B_M + rb, tm))
    a("v_mul_f32 v%d, s%d, v%d" % (B_BIAS + 2 * rb, BS_C, tm))
    a("v_sub_f32 v%d, 0, v%d" % (B_BIAS + 2 * rb, B_BIAS + 2 * rb))
    a("v_mov_b32 v%d, v%d" % (B_BIAS + 2 * rb + 1, B_BIAS + 2 * rb))
    for i in range(9):
        a("v_mul_f32 v%d, v%d, v%d" % (O(rb) + i, tm + 1, O(rb) + i))
    for j in range(0, 32, 2):
        a("v_pk_fma_f32 %s, %s, s[%d:%d], %s" % (vr(regs[j], 2), vr(regs[j], 2), BS_C, BS_C + 1, vr(B_BIAS + 2 * rb, 2)))
    for r in regs:
        a("v_exp_f32 v%d, v%d" % (r, r))
    for t in range(2):
        for j in range(8):
            a("v_cvt_pk_bf16_f32 v%d, v%d, v%d" % (P(rb, t) + j, S(rb, t) + 2 * j, S(rb, t) + 2 * j + 1))
    return L


def merge(valu, inserts):
    out = []
    n = len(valu)
    ins = sorted(((min(n, int(f * n)), i, lst) for i, (f, lst) in enumerate(inserts)), key=lambda x: (x[0], x[1]))
    j = 0
    for k in range(n + 1):
        while j < len(ins) and ins[j][0] == k:
            out.extend(ins[j][2])
            j += 1
        if k < n:
            out.append(valu[k])
    return out


def b_phase_a(a, kcur, vprev, round_scores):
    valu = b_softmax(0, round_scores)
    qk = b_qk(1, kcur)
    pv = b_pv(1, vprev)
    ins = [(0.02, b_load_k(1 - kcur)), (0.05, [qk[0]]), (0.15, [qk[1]]),
           (0.30, [pv[0]]), (0.45, [pv[1]]), (0.60, [pv[2]]), (0.75, [pv[3]])]
    for s_ in merge(valu, ins):
        a(s_)


def b_phase_b(a, knext, vcur, round_scores):
    valu = b_softmax(1, round_scores)
    pv = b_pv(0, vcur)
    qk = b_qk(0, knext)
    ins = [(0.02, b_load_v(1 - vcur)), (0.04, ["s_waitcnt vmcnt(6)", pv[0]]), (0.18, [pv[1]]), (0.32, [pv[2]]), (0.46, [pv[3]]),
           (0.62, ["s_waitcnt vmcnt(4)", qk[0]]), (0.76, [qk[1]])]
    for s_ in merge(valu, ins):
        a(s_)


def gen_battn_role(a, prefix, ws_ptr_sgpr, wg_sgpr, nsteps=32, round_scores=True):
    a.c("B-attention role")
    a.srd(BS_SRD, "s%d" % ws_ptr_sgpr, "s%d" % (ws_ptr_sgpr + 1), 0x4600000)
    a("v_and_b32 v%d, 63, v0" % B_LANE)
    a("v_lshrrev_b32 v%d, 6, v0" % B_T)
    a("s_nop 0")
    a("v_readfirstlane_b32 s%d, v%d" % (BS_T, B_T))
    a("s_nop 3")
    a("s_lshl_b32 s%d, s%d, 2" % (BS_ROW, wg_sgpr))
    a("s_add_u32 s%d, s%d, s%d" % (BS_ROW, BS_ROW, BS_T))
    a("s_lshl_b32 s%d, s%d, 6" % (BS_ROW, BS_ROW))
    a("v_and_b32 v%d, 31, v%d" % (B_T, B_LANE))
    a("v_lshlrev_b32 v%d, 5, v%d" % (B_T, B_T))
    a("v_lshrrev_b32 v%d, 5, v%d" % (B_T + 1, B_LANE))
    a("v_lshlrev_b32 v%d, 4, v%d" % (B_T + 1, B_T + 1))
    a("v_add_u32 v%d, v%d, v%d" % (B_KOFF, B_T, B_T + 1))
    a("v_lshlrev_b32 v%d, 4, v%d" % (B_VOFF, B_LANE))
    a("s_lshl_b32 s%d, s%d, 5" % (BS_T + 1, BS_ROW))
    a("s_add_u32 s%d, s%d, 0x%x" % (BS_T + 1, BS_T + 1, WS_QB))
    for rb in range(2):
        a("buffer_load_dwordx4 %s, v%d, s[%d:%d], s%d offen offset:%d"
          % (vr(B_QF + 4 * rb, 4), B_KOFF, BS_SRD, BS_SRD + 3, BS_T + 1, rb * 1024))
    a("s_mov_b32 s%d, 0x%x" % (BS_KCUR, WS_KB))
    a("s_mov_b32 s%d, 0x%x" % (BS_VCUR, WS_VBF))
    a("s_mov_b32 s%d, 0x%x" % (BS_C, f32bits(C_B)))
    a("s_mov_b32 s%d, 0x%x" % (BS_C + 1, f32bits(C_B)))
    for s_ in b_load_k(0) + b_load_v(0):
        a(s_)
    a("v_mov_b32 v%d, 0xff7fffff" % (B_M))
    a("v_mov_b32 v%d, 0xff7fffff" % (B_M + 1))
    for i in range(32):
        a("v_mov_b32 v%d, 0" % (B_O + i))
    for i in range(16):
        a("v_mov_b32 v%d, 0" % (P(1, 0) + i))
    for i in range(16):
        a("v_mov_b32 v%d, 0" % (VF(1, 0, 0) + i))
    a("s_waitcnt vmcnt(4)")
    for s_ in b_qk(0, 0):
        a(s_)
    a("s_mov_b32 s%d, %d" % (BS_CNT, nsteps // 2))
    lbl = prefix + "_bloop"
    a.label(lbl)
    for buf in range(2):
        b_phase_a(a, buf, 1 - buf, round_scores)
        b_phase_b(a, 1 - buf, buf, round_scores)
    a("s_sub_u32 s%d, s%d, 1" % (BS_CNT, BS_CNT))
    a("s_cmp_lg_u32 s%d, 0" % BS_CNT)
    a("s_cbranch_scc1 %s" % lbl)
    a("s_nop 1")
    for s_ in b_pv(1, 1):
        a(s_)
    a.nop(20)
    a("s_lshl_b32 s%d, s%d, 5" % (BS_T + 1, BS_ROW))
    a("s_add_u32 s%d, s%d, 0x%x" % (BS_T + 1, BS_T + 1, WS_OB))
    a("v_and_b32 v%d, 31, v%d" % (B_T, B_LANE))
    a("v_lshlrev_b32 v%d, 5, v%d" % (B_T, B_T))
    a("v_lshrrev_b32 v%d, 5, v%d" % (B_T + 1, B_LANE))
    a("v_lshlrev_b32 v%d, 3, v%d" % (B_T + 1, B_T + 1))
    a("v_add_u32 v%d, v%d, v%d" % (B_T, B_T, B_T + 1))
    for rb in range(2):
        l0, l1 = B_TM, B_TM + 1
        a("v_mov_b32 v%d, v%d" % (l0, O(rb) + 8))
        a("v_mov_b32 v%d, v%d" % (l1, O(rb) + 8))
        a("s_nop 1")
        a("v_permlane32_swap_b32 v%d, v%d" % (l0, l1))
        a("v_rcp_f32 v%d, v%d" % (l0, l0))
        a("s_nop 0")
        for i in range(8):
            a("v_mul_f32 v%d, v%d, v%d" % (O(rb) + i, l0, O(rb) + i))
        for h in range(2):
            a("v_cvt_pk_bf16_f32 v%d, v%d, v%d" % (B_TM + 2, O(rb) + 4 * h, O(rb) + 4 * h + 1))
            a("v_cvt_pk_bf16_f32 v%d, v%d, v%d" % (B_TM + 3, O(rb) + 4 * h + 2, O(rb) + 4 * h + 3))
            a("buffer_store_dwordx2 %s, v%d, s[%d:%d], s%d offen offset:%d"
              % (vr(B_TM + 2, 2), B_T, BS_SRD, BS_SRD + 3, BS_T + 1, rb * 1024 + 16 * h))
            a("s_nop 1")
    a("s_waitcnt vmcnt(0)")
```

```python
from asmlib import *

V_TID, V_LANE = 0, 1
V_T = 2
V_WOFF = 10
V_XOFFE, V_XOFFO = 11, 12
V_WRD = 13
V_XRD = 15
V_OUT = 19
V_ST0 = 20
V_FR = 28
V_ACC = 64
G_NVGPR = 128

S_SRDA, S_SRDB, S_SRDC = 4, 8, 12
S_WG, S_W, S_WN, S_WM = 16, 17, 18, 19
S_R = 20
S_ACUR, S_BCUR = 21, 22
S_C0, S_C1 = 23, 24
S_SCALE = 25
S_LDSW, S_LDSX = 26, 27
S_T0, S_T1 = 28, 29
S_P = 30
S_PTR = 40

STAGE_BYTES = 32768
XOFF_IN_STAGE = 16384


ACC_BASE = [V_ACC]


def acc(tn, tm):
    return ACC_BASE[0] + (tn * 2 + tm) * 16


def g_setup(a, lda, ldb, ldc_row):
    a.c("gemm setup")
    a("v_and_b32 v%d, 63, v0" % V_LANE)
    a("v_lshrrev_b32 v%d, 6, v0" % V_T)
    a("s_nop 0")
    a("v_readfirstlane_b32 s%d, v%d" % (S_W, V_T))
    a("s_nop 3")
    a("s_and_b32 s%d, s%d, 1" % (S_WN, S_W))
    a("s_lshr_b32 s%d, s%d, 1" % (S_WM, S_W))
    a("s_lshl_b32 s%d, s%d, 12" % (S_LDSW, S_W))
    a("s_add_u32 s%d, s%d, %d" % (S_LDSX, S_LDSW, XOFF_IN_STAGE))
    L = V_LANE
    t = V_T
    a("v_lshrrev_b32 v%d, 4, v%d" % (t, L))
    a("v_and_b32 v%d, 15, v%d" % (t + 1, L))
    a("v_lshlrev_b32 v%d, 2, v%d" % (t + 2, t))
    a("v_xor_b32 v%d, v%d, v%d" % (t + 1, t + 1, t + 2))
    a("v_lshlrev_b32 v%d, 4, v%d" % (t + 1, t + 1))
    a("s_mov_b32 s%d, %d" % (S_T0, ldb))
    a("v_mul_lo_u32 v%d, v%d, s%d" % (t + 2, t, S_T0))
    a("v_add_u32 v%d, v%d, v%d" % (V_WOFF, t + 1, t + 2))
    a("v_lshrrev_b32 v%d, 3, v%d" % (t + 3, L))
    a("v_and_b32 v%d, 7, v%d" % (t + 1, L))
    a("v_xor_b32 v%d, v%d, v%d" % (t + 1, t + 1, t))
    a("v_lshlrev_b32 v%d, 4, v%d" % (t + 1, t + 1))
    a("s_mov_b32 s%d, %d" % (S_T0, lda))
    a("v_mul_lo_u32 v%d, v%d, s%d" % (t + 2, t + 3, S_T0))
    a("v_add_u32 v%d, v%d, v%d" % (V_XOFFE, t + 1, t + 2))
    a("v_xor_b32 v%d, 64, v%d" % (V_XOFFO, V_XOFFE))
    a("v_lshrrev_b32 v%d, 5, v%d" % (t, L))
    a("v_bfe_u32 v%d, v%d, 4, 1" % (t + 1, L))
    a("v_bfe_u32 v%d, v%d, 2, 2" % (t + 2, L))
    a("v_and_b32 v%d, 3, v%d" % (t + 3, L))
    a("v_lshlrev_b32 v%d, 3, v%d" % (t + 4, t))
    a("v_add_u32 v%d, v%d, v%d" % (t + 4, t + 4, t + 2))
    a("v_lshlrev_b32 v%d, 8, v%d" % (t + 4, t + 4))
    a("v_lshrrev_b32 v%d, 1, v%d" % (t + 5, t + 3))
    a("v_lshlrev_b32 v%d, 1, v%d" % (t + 6, t + 1))
    a("v_add_u32 v%d, v%d, v%d" % (t + 5, t + 5, t + 6))
    a("s_lshl_b32 s%d, s%d, 3" % (S_T0, S_WN))
    a("v_add_u32 v%d, s%d, v%d" % (t + 5, S_T0, t + 5))
    a("v_lshlrev_b32 v%d, 2, v%d" % (t + 6, t + 2))
    a("v_and_b32 v%d, 1, v%d" % (t + 3, t + 3))
    a("v_lshlrev_b32 v%d, 3, v%d" % (t + 3, t + 3))
    a("v_add_u32 v%d, v%d, v%d" % (t + 4, t + 4, t + 3))
    for tn in range(2):
        a("v_add_u32 v%d, %d, v%d" % (t + 7, 4 * tn, t + 5))
        a("v_xor_b32 v%d, v%d, v%d" % (t + 7, t + 7, t + 6))
        a("v_lshlrev_b32 v%d, 4, v%d" % (t + 7, t + 7))
        a("v_add_u32 v%d, v%d, v%d" % (V_WRD + tn, t + 4, t + 7))
    a("v_and_b32 v%d, 31, v%d" % (t + 1, L))
    a("s_lshl_b32 s%d, s%d, 6" % (S_T0, S_WM))
    a("v_add_u32 v%d, s%d, v%d" % (t + 2, S_T0, t + 1))
    a("v_lshlrev_b32 v%d, 7, v%d" % (t + 2, t + 2))
    a("v_bfe_u32 v%d, v%d, 1, 3" % (t + 3, L))
    for ks in range(4):
        a("v_add_u32 v%d, %d, v%d" % (t + 4, 2 * ks, t))
        a("v_xor_b32 v%d, v%d, v%d" % (t + 4, t + 4, t + 3))
        a("v_lshlrev_b32 v%d, 4, v%d" % (t + 4, t + 4))
        a("v_add_u32 v%d, v%d, v%d" % (V_XRD + ks, t + 2, t + 4))
    a("s_mov_b32 s%d, %d" % (S_T0, ldc_row))
    a("v_mul_lo_u32 v%d, v%d, s%d" % (t + 2, t + 1, S_T0))
    a("v_lshlrev_b32 v%d, 4, v%d" % (t + 3, t))
    a("v_add_u32 v%d, v%d, v%d" % (V_OUT, t + 2, t + 3))


def g_issue_dma(a, stage, lda, ldb):
    base = stage * STAGE_BYTES
    for i in range(4):
        a("s_add_u32 m0, s%d, %d" % (S_LDSW, base + i * 1024))
        a("s_add_u32 s%d, s%d, %d" % (S_T0, S_BCUR, i * 4 * ldb))
        a("buffer_load_dwordx4 v%d, s[%d:%d], s%d offen lds" % (V_WOFF, S_SRDB, S_SRDB + 3, S_T0))
    for i in range(4):
        a("s_add_u32 m0, s%d, %d" % (S_LDSX, base + i * 1024))
        a("s_add_u32 s%d, s%d, %d" % (S_T0, S_ACUR, i * 8 * lda))
        v = V_XOFFE if i % 2 == 0 else V_XOFFO
        a("buffer_load_dwordx4 v%d, s[%d:%d], s%d offen lds" % (v, S_SRDA, S_SRDA + 3, S_T0))
    a("s_add_u32 s%d, s%d, %d" % (S_BCUR, S_BCUR, 64 * ldb))
    a("s_add_u32 s%d, s%d, 128" % (S_ACUR, S_ACUR))


def g_reads(a, stage, ks, fset):
    base = stage * STAGE_BYTES
    w0 = V_FR + 16 * fset
    x0 = w0 + 8
    for tn in range(2):
        for t in range(2):
            off = base + (16 * ks + 4 * t) * 256
            a("ds_read_b64_tr_b16 %s, v%d offset:%d" % (vr(w0 + 4 * tn + 2 * t, 2), V_WRD + tn, off))
    for tm in range(2):
        off = base + XOFF_IN_STAGE + tm * 4096
        a("ds_read_b128 %s, v%d offset:%d" % (vr(x0 + 4 * tm, 4), V_XRD + ks, off))


def g_mfmas(a, fset, zero_c=False):
    w0 = V_FR + 16 * fset
    x0 = w0 + 8
    for tn in range(2):
        for tm in range(2):
            d = acc(tn, tm)
            c = "0" if zero_c else vr(d, 16)
            a("v_mfma_f32_32x32x16_bf16 %s, %s, %s, %s" % (vr(d, 16), vr(w0 + 4 * tn, 4), vr(x0 + 4 * tm, 4), c))


def g_iter(a, stage, lda, ldb, first=False, dma=None, vm_wait=0):
    a.wait(vm=vm_wait)
    a("s_barrier")
    if dma is not None:
        dma()
    g_reads(a, stage, 0, 0)
    g_reads(a, stage, 1, 1)
    for ks in range(4):
        a.wait(lgkm=6 if ks < 3 else 0)
        g_mfmas(a, ks % 2, zero_c=(first and ks == 0))
        if ks + 2 < 4:
            g_reads(a, stage, ks + 2, ks % 2)


def g_epilogue_store(a, use_scale=True):
    a.nop(20)
    k = 0
    for tm in range(2):
        soff = S_C0 if tm == 0 else S_C1
        for tn in range(2):
            base = acc(tn, tm)
            for pr in range(2):
                r = base + 8 * pr
                t0 = V_ST0 + 4 * (k % 2)
                k += 1
                if use_scale:
                    for j in range(8):
                        a("v_mul_f32 v%d, s%d, v%d" % (r + j, S_SCALE, r + j))
                a("v_cvt_pk_bf16_f32 v%d, v%d, v%d" % (t0, r, r + 1))
                a("v_cvt_pk_bf16_f32 v%d, v%d, v%d" % (t0 + 1, r + 2, r + 3))
                a("v_cvt_pk_bf16_f32 v%d, v%d, v%d" % (t0 + 2, r + 4, r + 5))
                a("v_cvt_pk_bf16_f32 v%d, v%d, v%d" % (t0 + 3, r + 6, r + 7))
                a("s_nop 1")
                a("v_permlane32_swap_b32 v%d, v%d" % (t0, t0 + 2))
                a("v_permlane32_swap_b32 v%d, v%d" % (t0 + 1, t0 + 3))
                a("buffer_store_dwordx4 %s, v%d, s[%d:%d], s%d offen offset:%d"
                  % (vr(t0, 4), V_OUT, S_SRDC, S_SRDC + 3, soff, 64 * tn + 32 * pr))
```

```python
import sys
from asmlib import *
from aattn_role import *
def emit_a_dispatch(a, name):
    a("s_cmp_ge_u32 s2, 512")
    a("s_cbranch_scc1 %s_end" % name)
    a("s_and_b32 s32, s2, 255")
    a("s_and_b32 s33, s32, 7")
    a("s_lshr_b32 s34, s32, 3")
    a("s_lshl_b32 s30, s33, 2")
    a("s_lshr_b32 s35, s34, 3")
    a("s_add_u32 s30, s30, s35")
    a("s_and_b32 s31, s34, 7")
    a("s_sub_u32 s35, 15, s31")
    a("s_cmp_ge_u32 s2, 256")
    a("s_cselect_b32 s31, s35, s31")
def gen(name="a_kernel"):
    a = Asm()
    emit_a_dispatch(a, name)
    a("s_load_dwordx2 s[40:41], s[0:1], 112")
    a("s_waitcnt lgkmcnt(0)")
    gen_aattn_role(a, name, 40, 30, 31)
    a.label("%s_end" % name)
    a("s_endpgm")
    return kernel_head(name) + a.text() + kernel_desc(name, A_NVGPR, 64)
if __name__ == "__main__":
    head = open("gated_mix__compressed_kv_cla__grouped_kv_mqa__prompt.s.ref").read().split("; Override")[0]
    src = head + "; @launch kernel=a_kernel grid=(512,1,1) block=(256,1,1) lds=65536\n"
    src += '.amdgcn_target "amdgcn-amd-amdhsa--gfx950"\n' + gen()
    open("a_test.s", "w").write(src)
```

```python
import sys
from asmlib import *
from battn_role import *
def gen(name="b_kernel", round_scores=True):
    a = Asm()
    a("s_cmp_ge_u32 s2, 256")
    a("s_cbranch_scc1 %s_end" % name)
    a("s_load_dwordx2 s[40:41], s[0:1], 112")
    a("s_mov_b32 s30, s2")
    a("s_waitcnt lgkmcnt(0)")
    gen_battn_role(a, name, 40, 30, round_scores=round_scores)
    a.label("%s_end" % name)
    a("s_endpgm")
    return kernel_head(name) + a.text() + kernel_desc(name, B_NVGPR, 64)
if __name__ == "__main__":
    head = open("gated_mix__compressed_kv_cla__grouped_kv_mqa__prompt.s.ref").read().split("; Override")[0]
    for nm, rs in (("b_test.s", True), ("b_test_noround.s", False)):
        src = head + "; @launch kernel=b_kernel grid=(256,1,1) block=(256,1,1) lds=0\n"
        src += '.amdgcn_target "amdgcn-amd-amdhsa--gfx950"\n' + gen(round_scores=rs)
        open("work/" + nm, "w").write(src)
```

```python
from asmlib import *
from gemm_role import *
from battn_role import WS_QB, WS_KB, WS_VBF, WS_OB, WS_G

def gen_l0(name="l0_kernel"):
    a = Asm()
    a("s_cmp_ge_u32 s2, 80")
    a("s_cbranch_scc1 %s_end" % name)
    a("s_load_dwordx2 s[%d:%d], s[0:1], 0" % (S_PTR, S_PTR + 1))
    a("s_load_dwordx2 s[%d:%d], s[0:1], 56" % (S_PTR + 2, S_PTR + 3))
    a("s_load_dwordx4 s[%d:%d], s[0:1], 64" % (S_PTR + 4, S_PTR + 7))
    a("s_load_dwordx2 s[%d:%d], s[0:1], 88" % (S_PTR + 8, S_PTR + 9))
    a("s_load_dwordx2 s[%d:%d], s[0:1], 112" % (S_PTR + 10, S_PTR + 11))
    a("s_waitcnt lgkmcnt(0)")
    a("s_cmp_ge_u32 s2, 64")
    a("s_cbranch_scc1 %s_kv" % name)
    LDA, LDB, LDC = 1024, 1024, 1024
    a("s_mov_b32 s%d, s2" % S_WG)
    g_setup(a, LDA, LDB, LDC)
    a.srd(S_SRDA, "s%d" % S_PTR, "s%d" % (S_PTR + 1), 0x200000)
    a.srd(S_SRDB, "s%d" % (S_PTR + 2), "s%d" % (S_PTR + 3), 0x80000)
    a.srd(S_SRDC, "s%d" % (S_PTR + 10), "s%d" % (S_PTR + 11), 0x4600000)
    P = S_P
    a("s_lshr_b32 s%d, s%d, 2" % (P, S_WG))
    a("s_and_b32 s%d, s%d, 3" % (P + 1, S_WG))
    a("s_lshl_b32 s%d, s%d, 7" % (S_T0, P))
    a("s_lshl_b32 s%d, s%d, 5" % (S_ACUR, S_W))
    a("s_add_u32 s%d, s%d, s%d" % (S_ACUR, S_ACUR, S_T0))
    a("s_lshl_b32 s%d, s%d, 10" % (S_ACUR, S_ACUR))
    a("s_lshl_b32 s%d, s%d, 14" % (S_BCUR, S_W))
    a("s_lshl_b32 s%d, s%d, 8" % (S_T0, P + 1))
    a("s_add_u32 s%d, s%d, s%d" % (S_BCUR, S_BCUR, S_T0))
    a("s_lshl_b32 s%d, s%d, 7" % (S_C0, P))
    a("s_lshl_b32 s%d, s%d, 6" % (S_T0, S_WM))
    a("s_add_u32 s%d, s%d, s%d" % (S_C0, S_C0, S_T0))
    a("s_lshl_b32 s%d, s%d, 10" % (S_C0, S_C0))
    a("s_lshl_b32 s%d, s%d, 8" % (S_T0, P + 1))
    a("s_add_u32 s%d, s%d, s%d" % (S_C0, S_C0, S_T0))
    a("s_lshl_b32 s%d, s%d, 7" % (S_T0, S_WN))
    a("s_add_u32 s%d, s%d, s%d" % (S_C0, S_C0, S_T0))
    a("s_add_u32 s%d, s%d, 0x%x" % (S_C0, S_C0, WS_QB))
    a("s_add_u32 s%d, s%d, %d" % (S_C1, S_C0, 32 * 1024))
    g_issue_dma(a, 0, LDA, LDB)
    for it in range(8):
        dma = (lambda st=(it + 1) % 2: g_issue_dma(a, st, LDA, LDB)) if it < 7 else None
        g_iter(a, it % 2, LDA, LDB, first=(it == 0), dma=dma)
    g_epilogue_store(a, use_scale=False)
    a("s_waitcnt vmcnt(0)")
    a("s_branch %s_end" % name)
    a.label("%s_kv" % name)
    kv_role(a, name)
    a.label("%s_end" % name)
    a("s_endpgm")
    return kernel_head(name) + a.text() + kernel_desc(name, G_NVGPR, 64)

def kv_role(a, name):
    L, t = 1, 2
    SR_X, SR_WK, SR_WV, SR_GW, SR_WS = 4, 8, 12, 16 + 16, 16 + 20
    a.srd(SR_X, "s%d" % S_PTR, "s%d" % (S_PTR + 1), 0x200000)
    a.srd(SR_WK, "s%d" % (S_PTR + 4), "s%d" % (S_PTR + 5), 16384)
    a.srd(SR_WV, "s%d" % (S_PTR + 6), "s%d" % (S_PTR + 7), 16384)
    a.srd(SR_GW, "s%d" % (S_PTR + 8), "s%d" % (S_PTR + 9), 1024)
    a.srd(SR_WS, "s%d" % (S_PTR + 10), "s%d" % (S_PTR + 11), 0x4600000)
    a("v_and_b32 v%d, 63, v0" % L)
    a("v_lshrrev_b32 v%d, 6, v0" % t)
    a("s_nop 0")
    a("v_readfirstlane_b32 s17, v%d" % t)
    a("s_nop 3")
    a("v_lshlrev_b32 v%d, 5, v0" % t)
    a("v_lshlrev_b32 v%d, 6, v0" % (t + 1))
    for half in range(2):
        so, lo = half * 256 * 32, half * 256 * 64
        a("buffer_load_dwordx4 v[20:23], v%d, s[%d:%d], 0 offen offset:%d" % (t, SR_WK, SR_WK + 3, so) if so < 4096 else "s_nop 0")
        if so >= 4096:
            a("v_add_u32 v%d, %d, v%d" % (t + 2, so, t))
            a("buffer_load_dwordx4 v[20:23], v%d, s[%d:%d], 0 offen" % (t + 2, SR_WK, SR_WK + 3))
            a("buffer_load_dwordx4 v[24:27], v%d, s[%d:%d], 0 offen offset:16" % (t + 2, SR_WK, SR_WK + 3))
            a("buffer_load_dwordx4 v[28:31], v%d, s[%d:%d], 0 offen" % (t + 2, SR_WV, SR_WV + 3))
            a("buffer_load_dwordx4 v[32:35], v%d, s[%d:%d], 0 offen offset:16" % (t + 2, SR_WV, SR_WV + 3))
        else:
            a("buffer_load_dwordx4 v[24:27], v%d, s[%d:%d], 0 offen offset:16" % (t, SR_WK, SR_WK + 3))
            a("buffer_load_dwordx4 v[28:31], v%d, s[%d:%d], 0 offen" % (t, SR_WV, SR_WV + 3))
            a("buffer_load_dwordx4 v[32:35], v%d, s[%d:%d], 0 offen offset:16" % (t, SR_WV, SR_WV + 3))
        a("s_waitcnt vmcnt(0)")
        a("ds_write_b128 v%d, v[20:23] offset:%d" % (t + 1, lo))
        a("ds_write_b128 v%d, v[24:27] offset:%d" % (t + 1, lo + 16))
        a("ds_write_b128 v%d, v[28:31] offset:%d" % (t + 1, lo + 32))
        a("ds_write_b128 v%d, v[32:35] offset:%d" % (t + 1, lo + 48))
    a("s_waitcnt lgkmcnt(0)")
    a("s_barrier")
    a("s_sub_u32 s18, s2, 64")
    a("s_lshl_b32 s18, s18, 7")
    a("s_lshl_b32 s19, s17, 5")
    a("s_add_u32 s18, s18, s19")
    a("v_and_b32 v%d, 31, v%d" % (t, L))
    a("v_lshlrev_b32 v%d, 10, v%d" % (t + 1, t))
    a("v_lshrrev_b32 v%d, 5, v%d" % (t + 2, L))
    a("v_lshlrev_b32 v%d, 4, v%d" % (t + 3, t + 2))
    a("v_add_u32 v10, v%d, v%d" % (t + 1, t + 3))
    a("s_lshl_b32 s20, s18, 10")
    a("v_bfe_u32 v%d, v%d, 4, 1" % (t + 4, L))
    a("v_bfe_u32 v%d, v%d, 2, 2" % (t + 5, L))
    a("v_and_b32 v%d, 3, v%d" % (t + 6, L))
    a("v_lshlrev_b32 v%d, 3, v%d" % (t + 7, t + 2))
    a("v_add_u32 v%d, v%d, v%d" % (t + 7, t + 7, t + 5))
    a("v_lshlrev_b32 v%d, 6, v%d" % (t + 7, t + 7))
    a("v_lshlrev_b32 v%d, 5, v%d" % (t + 4, t + 4))
    a("v_lshlrev_b32 v%d, 3, v%d" % (t + 6, t + 6))
    a("v_add_u32 v%d, v%d, v%d" % (t + 7, t + 7, t + 4))
    a("v_add_u32 v11, v%d, v%d" % (t + 7, t + 6))
    a("v_lshlrev_b32 v12, 4, v%d" % (t + 2))
    for ks0 in range(0, 32, 4):
        for j in range(4):
            ks = ks0 + j
            a("buffer_load_dwordx4 %s, v10, s[%d:%d], s20 offen offset:%d" % (vr(20 + 4 * j, 4), SR_X, SR_X + 3, 32 * ks))
            a("v_mov_b32 v%d, 0" % (52 + 4 * j)); a("v_mov_b32 v%d, 0" % (53 + 4 * j))
            a("v_mov_b32 v%d, 0" % (54 + 4 * j)); a("v_mov_b32 v%d, 0" % (55 + 4 * j))
            for tt in range(2):
                a("ds_read_b64_tr_b16 %s, v11 offset:%d" % (vr(36 + 4 * j + 2 * tt, 2), (16 * ks + 4 * tt) * 64))
        a("v_cmp_eq_u32 vcc, 0, v%d" % t)
        a("s_and_saveexec_b64 s[22:23], vcc")
        for j in range(4):
            ks = ks0 + j
            a("buffer_load_dwordx4 %s, v12, s[%d:%d], 0 offen offset:%d" % (vr(52 + 4 * j, 4), SR_GW, SR_GW + 3, 32 * ks))
        a("s_mov_b64 exec, s[22:23]")
        a("s_waitcnt vmcnt(0) lgkmcnt(0)")
        for j in range(4):
            z = (ks0 == 0 and j == 0)
            a("v_mfma_f32_32x32x16_bf16 v[96:111], %s, %s, %s" % (vr(36 + 4 * j, 4), vr(20 + 4 * j, 4), "0" if z else "v[96:111]"))
            a("v_mfma_f32_32x32x16_bf16 v[112:127], %s, %s, %s" % (vr(52 + 4 * j, 4), vr(20 + 4 * j, 4), "0" if z else "v[112:127]"))
    a.nop(20)
    a("v_lshlrev_b32 v%d, 5, v%d" % (t + 1, t))
    a("v_lshlrev_b32 v%d, 3, v%d" % (t + 3, t + 2))
    a("v_add_u32 v%d, v%d, v%d" % (t + 1, t + 1, t + 3))
    a("s_lshl_b32 s21, s18, 5")
    a("s_add_u32 s21, s21, 0x%x" % WS_KB)
    for h in range(2):
        a("v_cvt_pk_bf16_f32 v20, v%d, v%d" % (96 + 4 * h, 97 + 4 * h))
        a("v_cvt_pk_bf16_f32 v21, v%d, v%d" % (98 + 4 * h, 99 + 4 * h))
        a("buffer_store_dwordx2 v[20:21], v%d, s[%d:%d], s21 offen offset:%d" % (t + 1, SR_WS, SR_WS + 3, 16 * h))
        a("s_nop 1")
    a("v_bfe_u32 v20, v%d, 4, 1" % t)
    a("v_lshlrev_b32 v20, 10, v20")
    a("v_bfe_u32 v21, v%d, 2, 1" % t)
    a("v_lshlrev_b32 v21, 9, v21")
    a("v_add_u32 v20, v20, v21")
    a("v_bfe_u32 v21, v%d, 3, 1" % t)
    a("v_lshlrev_b32 v21, 2, v21")
    a("v_and_b32 v22, 3, v%d" % t)
    a("v_add_u32 v21, v21, v22")
    a("v_lshlrev_b32 v21, 1, v21")
    a("v_add_u32 v20, v20, v21")
    a("v_lshlrev_b32 v21, 6, v%d" % (t + 2))
    a("v_add_u32 v20, v20, v21")
    a("s_lshr_b32 s21, s18, 5")
    a("s_lshl_b32 s21, s21, 11")
    a("s_add_u32 s21, s21, 0x%x" % WS_VBF)
    for i in range(8):
        d = 8 * (i // 4) + (i % 4)
        a("v_cvt_pk_bf16_f32 v22, v%d, v%d" % (104 + i, 104 + i))
        a("buffer_store_short v22, v20, s[%d:%d], s21 offen offset:%d" % (SR_WS, SR_WS + 3, d * 16))
        a("s_nop 0")
    a("v_lshlrev_b32 v21, 6, v%d" % (t + 2))
    a("v_sub_u32 v23, v20, v21")
    a("v_lshlrev_b32 v21, 7, v%d" % (t + 2))
    a("v_add_u32 v23, v23, v21")
    a("v_mov_b32 v24, 0")
    a("v_mov_b32 v25, 0x3f80")
    a("v_cmp_eq_u32 vcc, 0, v%d" % (t + 2))
    a("s_nop 1")
    a("v_cndmask_b32 v25, v24, v25, vcc")
    a("buffer_store_short v25, v23, s[%d:%d], s21 offen offset:%d" % (SR_WS, SR_WS + 3, 16 * 16))
    for i in range(1, 8):
        a("buffer_store_short v24, v23, s[%d:%d], s21 offen offset:%d" % (SR_WS, SR_WS + 3, (16 + i) * 16))
    a("v_cvt_pk_bf16_f32 v26, 0, v112")
    a("v_mul_f32 v26, 0xbfb8aa3b, v26")
    a("v_exp_f32 v26, v26")
    a("s_nop 0")
    a("v_add_f32 v26, 1.0, v26")
    a("v_rcp_f32 v26, v26")
    a("s_nop 0")
    a("v_cvt_pk_bf16_f32 v26, 0, v26")
    a("v_lshlrev_b32 v27, 2, v%d" % t)
    a("s_lshl_b32 s21, s18, 2")
    a("s_add_u32 s21, s21, 0x%x" % WS_G)
    a("v_cmp_eq_u32 vcc, 0, v%d" % (t + 2))
    a("s_and_saveexec_b64 s[22:23], vcc")
    a("buffer_store_dword v26, v27, s[%d:%d], s21 offen" % (SR_WS, SR_WS + 3))
    a("s_mov_b64 exec, s[22:23]")
    a("s_waitcnt vmcnt(0)")

if __name__ == "__main__":
    head = open("gated_mix__compressed_kv_cla__grouped_kv_mqa__prompt.s.ref").read().split("; Override")[0]
    src = head + "; @launch kernel=l0_kernel grid=(80,1,1) block=(256,1,1) lds=65536\n"
    src += '.amdgcn_target "amdgcn-amd-amdhsa--gfx950"\n' + gen_l0()
    open("l0_test.s", "w").write(src)
```

```python
import struct, math
from asmlib import *
from gemm_role import *

def f32bits(x):
    return struct.unpack("<I", struct.pack("<f", x))[0]

C_A = math.log2(math.e) / math.sqrt(128.0)

WS_QA, WS_KA, WS_VA, WS_CTX = 0x0000000, 0x1000000, 0x2000000, 0x3000000

def l1_tile_params_ab(a, sJ, sU):
    P = S_P
    a("s_lshl_b32 s%d, s%d, 5" % (P, S_T1))
    a("s_add_u32 s%d, s%d, s%d" % (P, P, sU))
    a("s_and_b32 s%d, s%d, 15" % (P + 1, P))
    a("s_lshr_b32 s%d, s%d, 4" % (P, P))
    a("s_lshl_b32 s%d, s%d, 3" % (P, P))
    a("s_add_u32 s%d, s%d, s%d" % (P, P, sJ))
    a("s_lshr_b32 s%d, s%d, 5" % (P + 3, P))
    a("s_and_b32 s%d, s%d, 31" % (P + 2, P))
    a("s_cmp_eq_u32 s%d, 0" % (P + 3))
    a("s_cselect_b32 s%d, s%d, s%d" % (S_SRDA, S_PTR + 0, S_PTR + 2))
    a("s_cselect_b32 s%d, s%d, s%d" % (S_SRDA + 1, S_PTR + 1, S_PTR + 3))
    a("s_cmp_eq_u32 s%d, 1" % (P + 3))
    a("s_cselect_b32 s%d, s%d, s%d" % (S_SRDB, S_PTR + 6, S_PTR + 4))
    a("s_cselect_b32 s%d, s%d, s%d" % (S_SRDB + 1, S_PTR + 7, S_PTR + 5))
    a("s_cmp_eq_u32 s%d, 2" % (P + 3))
    a("s_cselect_b32 s%d, s%d, s%d" % (S_SRDB, S_PTR + 8, S_SRDB))
    a("s_cselect_b32 s%d, s%d, s%d" % (S_SRDB + 1, S_PTR + 9, S_SRDB + 1))
    a("s_lshl_b32 s%d, s%d, 7" % (S_T0, P + 1))
    a("s_lshl_b32 s%d, s%d, 5" % (S_ACUR, S_W))
    a("s_add_u32 s%d, s%d, s%d" % (S_ACUR, S_ACUR, S_T0))
    a("s_lshl_b32 s%d, s%d, 10" % (S_ACUR, S_ACUR))
    a("s_lshl_b32 s%d, s%d, 17" % (S_BCUR, S_W))
    a("s_lshl_b32 s%d, s%d, 8" % (S_T0, P + 2))
    a("s_add_u32 s%d, s%d, s%d" % (S_BCUR, S_BCUR, S_T0))

def l1_tile_params_c(a):
    P = S_P
    a("s_lshl_b32 s%d, s%d, 24" % (S_C0, P + 3))
    a("s_lshl_b32 s%d, s%d, 19" % (S_T0, P + 2))
    a("s_add_u32 s%d, s%d, s%d" % (S_C0, S_C0, S_T0))
    a("s_lshl_b32 s%d, s%d, 15" % (S_T0, P + 1))
    a("s_add_u32 s%d, s%d, s%d" % (S_C0, S_C0, S_T0))
    a("s_lshl_b32 s%d, s%d, 14" % (S_T0, S_WM))
    a("s_add_u32 s%d, s%d, s%d" % (S_C0, S_C0, S_T0))
    a("s_lshl_b32 s%d, s%d, 7" % (S_T0, S_WN))
    a("s_add_u32 s%d, s%d, s%d" % (S_C0, S_C0, S_T0))
    a("s_add_u32 s%d, s%d, %d" % (S_C1, S_C0, 32 * 256))
    a("s_cmp_eq_u32 s%d, 0" % (P + 3))
    a("s_cselect_b32 s%d, 0x%x, 0x3f800000" % (S_SCALE, f32bits(C_A)))

def gen_l1(name="l1_kernel", ntiles=6, nwg=256):
    a = Asm()
    LDA, LDB, LDC = 1024, 8192, 256
    a("s_cmp_ge_u32 s2, %d" % nwg)
    a("s_cbranch_scc1 %s_end" % name)
    a("s_mov_b32 s%d, s2" % S_WG)
    a("s_load_dwordx4 s[%d:%d], s[0:1], 0" % (S_PTR, S_PTR + 3))
    a("s_load_dwordx4 s[%d:%d], s[0:1], 16" % (S_PTR + 4, S_PTR + 7))
    a("s_load_dwordx2 s[%d:%d], s[0:1], 32" % (S_PTR + 8, S_PTR + 9))
    a("s_load_dwordx2 s[%d:%d], s[0:1], 112" % (S_PTR + 10, S_PTR + 11))
    a("s_waitcnt lgkmcnt(0)")
    sJ, sU = S_PTR + 12, S_PTR + 13
    a("s_and_b32 s%d, s%d, 7" % (sJ, S_WG))
    a("s_lshr_b32 s%d, s%d, 3" % (sU, S_WG))
    g_setup(a, LDA, LDB, LDC)
    a("s_mov_b32 s%d, 0x200000" % (S_SRDA + 2)); a("s_mov_b32 s%d, 0x20000" % (S_SRDA + 3))
    a("s_mov_b32 s%d, 0x400000" % (S_SRDB + 2)); a("s_mov_b32 s%d, 0x20000" % (S_SRDB + 3))
    a.srd(S_SRDC, "s%d" % (S_PTR + 10), "s%d" % (S_PTR + 11), 0x3000000)
    a("s_mov_b32 s%d, 0" % S_R)
    a("s_mov_b32 s%d, 0" % S_T1)
    l1_tile_params_ab(a, sJ, sU)
    g_issue_dma(a, 0, LDA, LDB)
    a.label("%s_tile" % name)
    l1_tile_params_c(a)
    NK = 8
    for it in range(NK):
        if it < NK - 1:
            dma = (lambda st=(it + 1) % 2: g_issue_dma(a, st, LDA, LDB))
        else:
            def dma():
                a("s_add_u32 s%d, s%d, 1" % (S_T1, S_R))
                a("s_cmp_lt_u32 s%d, %d" % (S_T1, ntiles))
                a("s_cselect_b32 s%d, s%d, s%d" % (S_T1, S_T1, S_R))
                l1_tile_params_ab(a, sJ, sU)
                g_issue_dma(a, 0, LDA, LDB)
        g_iter(a, it % 2, LDA, LDB, first=(it == 0), dma=dma, vm_wait=0)
    g_epilogue_store(a)
    a("s_add_u32 s%d, s%d, 1" % (S_R, S_R))
    a("s_cmp_lt_u32 s%d, %d" % (S_R, ntiles))
    a("s_cbranch_scc1 %s_tile" % name)
    a("s_waitcnt vmcnt(0)")
    a.label("%s_end" % name)
    a("s_endpgm")
    return kernel_head(name) + a.text() + kernel_desc(name, G_NVGPR, 64)

if __name__ == "__main__":
    head = open("gated_mix__compressed_kv_cla__grouped_kv_mqa__prompt.s.ref").read().split("; Override")[0]
    src = head + "; @launch kernel=l1_kernel grid=(256,1,1) block=(256,1,1) lds=65536\n"
    src += '.amdgcn_target "amdgcn-amd-amdhsa--gfx950"\n' + gen_l1()
    open("l1_test.s", "w").write(src)
    print("wrote", len(src))
```

```python
from asmlib import *
import gemm_role as G
from gemm_role import *
from battn_role import WS_OB, WS_G
from aattn_role import WS_CTX

V_ACCB = 128
V_GT = 192
L3_NVGPR = 200

def seg_loop(a, prefix, nk, lda, ldb, last_dma):
    g_iter(a, 0, lda, ldb, first=True, dma=lambda: g_issue_dma(a, 1, lda, ldb))
    if nk == 2:
        g_iter(a, 1, lda, ldb, dma=last_dma); return
    g_iter(a, 1, lda, ldb, dma=lambda: g_issue_dma(a, 0, lda, ldb))
    nmid = nk // 2 - 2
    if nmid > 0:
        a("s_mov_b32 s%d, %d" % (S_R, nmid))
        lbl = prefix + "_mid"
        a.label(lbl)
        g_iter(a, 0, lda, ldb, dma=lambda: g_issue_dma(a, 1, lda, ldb))
        g_iter(a, 1, lda, ldb, dma=lambda: g_issue_dma(a, 0, lda, ldb))
        a("s_sub_u32 s%d, s%d, 1" % (S_R, S_R))
        a("s_cmp_lg_u32 s%d, 0" % S_R)
        a("s_cbranch_scc1 %s" % lbl)
    g_iter(a, 0, lda, ldb, dma=lambda: g_issue_dma(a, 1, lda, ldb))
    g_iter(a, 1, lda, ldb, dma=last_dma)

def gen_l3(name="l3_kernel"):
    a = Asm()
    a("s_cmp_ge_u32 s2, 64")
    a("s_cbranch_scc1 %s_end" % name)
    a("s_load_dwordx2 s[%d:%d], s[0:1], 40" % (S_PTR, S_PTR + 1))
    a("s_load_dwordx2 s[%d:%d], s[0:1], 80" % (S_PTR + 2, S_PTR + 3))
    a("s_load_dwordx2 s[%d:%d], s[0:1], 96" % (S_PTR + 4, S_PTR + 5))
    a("s_load_dwordx2 s[%d:%d], s[0:1], 112" % (S_PTR + 10, S_PTR + 11))
    a("s_waitcnt lgkmcnt(0)")
    a("s_mov_b32 s%d, s2" % S_WG)
    P = S_P
    a("s_lshr_b32 s%d, s%d, 2" % (P, S_WG))
    a("s_and_b32 s%d, s%d, 3" % (P + 1, S_WG))
    LDA1, LDB = 8192, 1024
    g_setup(a, LDA1, LDB, 1024)
    a("s_add_u32 s%d, s%d, 0x%x" % (S_T0, S_PTR + 10, WS_CTX))
    a("s_addc_u32 s%d, s%d, 0" % (S_T1, S_PTR + 11))
    a.srd(S_SRDA, "s%d" % S_T0, "s%d" % S_T1, 0x1000000)
    a.srd(S_SRDB, "s%d" % S_PTR, "s%d" % (S_PTR + 1), 0x400000)
    a.srd(S_SRDC, "s%d" % (S_PTR + 4), "s%d" % (S_PTR + 5), 0x200000)
    a("s_lshl_b32 s%d, s%d, 7" % (S_T0, P))
    a("s_lshl_b32 s%d, s%d, 5" % (S_ACUR, S_W))
    a("s_add_u32 s%d, s%d, s%d" % (S_ACUR, S_ACUR, S_T0))
    a("s_lshl_b32 s%d, s%d, 13" % (S_ACUR, S_ACUR))
    a("s_lshl_b32 s%d, s%d, 14" % (S_BCUR, S_W))
    a("s_lshl_b32 s%d, s%d, 8" % (S_T0, P + 1))
    a("s_add_u32 s%d, s%d, s%d" % (S_BCUR, S_BCUR, S_T0))
    g_issue_dma(a, 0, LDA1, LDB)
    def dma_seg2():
        LDA2 = 1024
        L, t = V_LANE, V_T
        a("v_lshrrev_b32 v%d, 4, v%d" % (t, L))
        a("v_lshrrev_b32 v%d, 3, v%d" % (t + 3, L))
        a("v_and_b32 v%d, 7, v%d" % (t + 1, L))
        a("v_xor_b32 v%d, v%d, v%d" % (t + 1, t + 1, t))
        a("v_lshlrev_b32 v%d, 4, v%d" % (t + 1, t + 1))
        a("v_lshlrev_b32 v%d, 10, v%d" % (t + 2, t + 3))
        a("v_add_u32 v%d, v%d, v%d" % (V_XOFFE, t + 1, t + 2))
        a("v_xor_b32 v%d, 64, v%d" % (V_XOFFO, V_XOFFE))
        a("s_add_u32 s%d, s%d, 0x%x" % (S_T0, S_PTR + 10, WS_OB))
        a("s_addc_u32 s%d, s%d, 0" % (S_T1, S_PTR + 11))
        a.srd(S_SRDA, "s%d" % S_T0, "s%d" % S_T1, 0x200000)
        a.srd(S_SRDB, "s%d" % (S_PTR + 2), "s%d" % (S_PTR + 3), 0x80000)
        a("s_lshl_b32 s%d, s%d, 7" % (S_T0, P))
        a("s_lshl_b32 s%d, s%d, 5" % (S_ACUR, S_W))
        a("s_add_u32 s%d, s%d, s%d" % (S_ACUR, S_ACUR, S_T0))
        a("s_lshl_b32 s%d, s%d, 10" % (S_ACUR, S_ACUR))
        a("s_lshl_b32 s%d, s%d, 14" % (S_BCUR, S_W))
        a("s_lshl_b32 s%d, s%d, 8" % (S_T0, P + 1))
        a("s_add_u32 s%d, s%d, s%d" % (S_BCUR, S_BCUR, S_T0))
        g_issue_dma(a, 0, LDA2, LDB)
    seg_loop(a, name + "_s1", 64, LDA1, LDB, dma_seg2)
    G.ACC_BASE[0] = V_ACCB
    seg_loop(a, name + "_s2", 8, 1024, LDB, None)
    G.ACC_BASE[0] = V_ACC
    a("s_lshl_b32 s%d, s%d, 7" % (S_T0, P))
    a("s_lshl_b32 s%d, s%d, 6" % (S_T1, S_WM))
    a("s_add_u32 s%d, s%d, s%d" % (S_T0, S_T0, S_T1))
    a("s_lshl_b32 s%d, s%d, 2" % (S_T0, S_T0))
    a("s_add_u32 s%d, s%d, 0x%x" % (S_T0, S_T0, WS_G))
    a("s_add_u32 s%d, s%d, 0x%x" % (S_T1, S_PTR + 10, 0))
    a.srd(S_SRDA, "s%d" % (S_PTR + 10), "s%d" % (S_PTR + 11), 0x4600000)
    a("v_and_b32 v%d, 31, v%d" % (V_T, V_LANE))
    a("v_lshlrev_b32 v%d, 2, v%d" % (V_T, V_T))
    a("buffer_load_dword v%d, v%d, s[%d:%d], s%d offen" % (V_GT, V_T, S_SRDA, S_SRDA + 3, S_T0))
    a("buffer_load_dword v%d, v%d, s[%d:%d], s%d offen offset:128" % (V_GT + 1, V_T, S_SRDA, S_SRDA + 3, S_T0))
    a("s_lshl_b32 s%d, s%d, 7" % (S_C0, P))
    a("s_lshl_b32 s%d, s%d, 6" % (S_T0, S_WM))
    a("s_add_u32 s%d, s%d, s%d" % (S_C0, S_C0, S_T0))
    a("s_lshl_b32 s%d, s%d, 10" % (S_C0, S_C0))
    a("s_lshl_b32 s%d, s%d, 8" % (S_T0, P + 1))
    a("s_add_u32 s%d, s%d, s%d" % (S_C0, S_C0, S_T0))
    a("s_lshl_b32 s%d, s%d, 7" % (S_T0, S_WN))
    a("s_add_u32 s%d, s%d, s%d" % (S_C0, S_C0, S_T0))
    a("s_add_u32 s%d, s%d, %d" % (S_C1, S_C0, 32 * 1024))
    a("s_waitcnt vmcnt(0)")
    for tm in range(2):
        a("v_sub_f32 v%d, 1.0, v%d" % (V_GT + 2 + tm, V_GT + tm))
        a("v_cvt_pk_bf16_f32 v%d, 0, v%d" % (V_GT + 2 + tm, V_GT + 2 + tm))
    a.nop(20)
    for tn in range(2):
        for tm in range(2):
            ba = V_ACC + (tn * 2 + tm) * 16
            bb = V_ACCB + (tn * 2 + tm) * 16
            for i in range(16):
                a("v_cvt_pk_bf16_f32 v%d, 0, v%d" % (ba + i, ba + i))
                a("v_cvt_pk_bf16_f32 v%d, 0, v%d" % (bb + i, bb + i))
                a("v_mul_f32 v%d, v%d, v%d" % (ba + i, V_GT + tm, ba + i))
                a("v_mul_f32 v%d, v%d, v%d" % (bb + i, V_GT + 2 + tm, bb + i))
                a("v_cvt_pk_bf16_f32 v%d, 0, v%d" % (ba + i, ba + i))
                a("v_cvt_pk_bf16_f32 v%d, 0, v%d" % (bb + i, bb + i))
                a("v_add_f32 v%d, v%d, v%d" % (ba + i, ba + i, bb + i))
    g_epilogue_store(a, use_scale=False)
    a("s_waitcnt vmcnt(0)")
    a.label("%s_end" % name)
    a("s_endpgm")
    return kernel_head(name) + a.text() + kernel_desc(name, L3_NVGPR, 64)
```

```python
import sys
from asmlib import *
from gen_l0 import gen_l0
from gen_l1 import gen_l1
from gen_l3 import gen_l3
from gen_btest import gen as gen_b
from gen_atest import gen as gen_a
def build(path, round_scores=True):
    head = open("gated_mix__compressed_kv_cla__grouped_kv_mqa__prompt.s.ref").read().split("; Override")[0]
    src = head
    src += "; @launch kernel=l0_kernel grid=(80,1,1) block=(256,1,1) lds=65536\n"
    src += "; @launch kernel=l1_kernel grid=(256,1,1) block=(256,1,1) lds=65536\n"
    src += "; @launch kernel=b_kernel grid=(256,1,1) block=(256,1,1) lds=0\n"
    src += "; @launch kernel=a_kernel grid=(512,1,1) block=(256,1,1) lds=65536\n"
    src += "; @launch kernel=l3_kernel grid=(64,1,1) block=(256,1,1) lds=65536\n"
    src += '.amdgcn_target "amdgcn-amd-amdhsa--gfx950"\n'
    src += gen_l0() + gen_l1() + gen_b(round_scores=round_scores) + gen_a() + gen_l3()
    open(path, "w").write(src)
    return len(src)
if __name__ == "__main__":
    out = sys.argv[1] if len(sys.argv) > 1 else "full_v1.s"
    rs = not (len(sys.argv) > 2 and sys.argv[2] == "noround")
    print(build(out, rs))
```

```python
from asmlib import *
import aattn_role as R
from aattn_role import (WS_QA, WS_KA, WS_VA, WS_CTX, A_LANE, A_T, A_Q, A_O, A_KRD, A_VRD, A_KOFF, A_VOFF, A_M, A_L,
                        A_REL, A_NEG, A_TM, A_OUT, AS_SRD, AS_W, AS_H, AS_T, AS_KCUR, AS_VCUR, AS_LDSK, AS_LDSV,
                        AS_J, AS_NT, AS_TILEBASE, AS_TMP, AS_THR, STAGE, VOFF_ST, O, a_setup)
from battn_role import merge

A_S0 = 106
A_S1 = 216
A_P = 138
A_KF = 154
A_VF = 170
A2_NVGPR = 248


def S(buf, sub):
    return (A_S0 if buf == 0 else A_S1) + 16 * sub


def dma_k(stage):
    L = []
    base = stage * STAGE
    for i in range(4):
        L += ["s_add_u32 m0, s%d, %d" % (AS_LDSK, base + i * 1024),
              "v_xor_b32 v%d, %d, v%d" % (A_T, 64 * i, A_KOFF),
              "buffer_load_dwordx4 v%d, s[%d:%d], s%d offen lds" % (A_T, AS_SRD, AS_SRD + 3, AS_KCUR),
              "s_add_u32 s%d, s%d, 1024" % (AS_KCUR, AS_KCUR)]
    L.append("s_add_u32 s%d, s%d, %d" % (AS_KCUR, AS_KCUR, 16384 - 4096))
    return L


def dma_v(stage):
    L = []
    base = stage * STAGE
    for i in range(4):
        L += ["s_add_u32 m0, s%d, %d" % (AS_LDSV, base + i * 1024), "s_nop 0",
              "buffer_load_dwordx4 v%d, s[%d:%d], s%d offen lds" % (A_VOFF, AS_SRD, AS_SRD + 3, AS_VCUR),
              "s_add_u32 s%d, s%d, 1024" % (AS_VCUR, AS_VCUR)]
    L.append("s_add_u32 s%d, s%d, %d" % (AS_VCUR, AS_VCUR, 16384 - 4096))
    return L


def qk_list(kstage, sbuf):
    base = kstage * STAGE
    seq = [(sub, s) for sub in range(2) for s in range(8)]
    rd = lambda idx: "ds_read_b128 %s, v%d offset:%d" % (vr(A_KF + 4 * (idx % 4), 4), A_KRD + seq[idx][1], base + seq[idx][0] * 8192)
    groups = []
    pre = [rd(i) for i in range(3)]
    for idx, (sub, s) in enumerate(seq):
        g = []
        if idx == 0:
            g += pre
        if idx + 3 < len(seq):
            g.append(rd(idx + 3))
        g.append("@W%d" % (3 if idx + 3 < len(seq) else len(seq) - 1 - idx))
        c = "0" if s == 0 else vr(S(sbuf, sub), 16)
        g.append("v_mfma_f32_32x32x16_bf16 %s, %s, %s, %s" % (vr(S(sbuf, sub), 16), vr(A_KF + 4 * (idx % 4), 4), vr(A_Q + 4 * s, 4), c))
        groups.append(g)
    return groups


def pv_list(vstage, kslist):
    base = vstage * STAGE
    seq = [(db, ks) for ks in kslist for db in range(4)]
    NS, LA = 8, 7
    def rd(idx):
        db, ks = seq[idx]
        return ["ds_read_b64_tr_b16 %s, v%d offset:%d" % (vr(A_KF + 4 * (idx % NS) + 2 * t, 2), A_VRD + db, base + VOFF_ST + (16 * ks + 8 * t) * 256) for t in range(2)]
    groups = []
    for idx, (db, ks) in enumerate(seq):
        g = []
        if idx == 0:
            for i in range(LA):
                g += rd(i)
        if idx + LA < len(seq):
            g += rd(idx + LA)
        g.append("@W%d" % (2 * LA if idx + LA < len(seq) else 2 * (len(seq) - 1 - idx)))
        g.append("v_mfma_f32_32x32x16_bf16 %s, %s, %s, %s" % (vr(O(db), 16), vr(A_KF + 4 * (idx % NS), 4), vr(A_P + 4 * ks, 4), vr(O(db), 16)))
        groups.append(g)
    return groups


def spread(valu, groups, start=0.0, end=1.0):
    n = len(groups)
    ins = [(start + (end - start) * (i / max(n, 1)), g) for i, g in enumerate(groups)]
    return merge(valu, ins)


def emit(a, lst):
    for s in lst:
        if s.startswith("@W"):
            a("s_waitcnt lgkmcnt(%s)" % s[2:])
        elif s.endswith(":"):
            a.raw(s)
        else:
            a(s)


def softmax_head(a_, sbuf, masked, prefix):
    L = []
    a = L.append
    regs = [S(sbuf, sub) + i for sub in range(2) for i in range(16)]
    if masked:
        for sub in range(2):
            for i in range(16):
                kk = 32 * sub + 8 * (i // 4) + (i % 4)
                a("v_cmp_lt_i32 vcc, v%d, %d" % (A_REL, kk))
                a("s_nop 1")
                a("v_cndmask_b32 v%d, v%d, v%d, vcc" % (regs[16 * sub + i], regs[16 * sub + i], A_NEG))
    tm = A_TM
    a("v_max3_f32 v%d, v%d, v%d, v%d" % (tm, regs[0], regs[1], regs[2]))
    a("v_max3_f32 v%d, v%d, v%d, v%d" % (tm + 1, regs[3], regs[4], regs[5]))
    idx, k = 6, 0
    while idx + 1 < 32:
        d = tm + (k % 2)
        a("v_max3_f32 v%d, v%d, v%d, v%d" % (d, d, regs[idx], regs[idx + 1]))
        idx += 2
        k += 1
    a("v_max_f32 v%d, v%d, v%d" % (tm, tm, tm + 1))
    a("v_mov_b32 v%d, v%d" % (tm + 1, tm))
    a("s_nop 1")
    a("v_permlane32_swap_b32 v%d, v%d" % (tm, tm + 1))
    a("v_max_f32 v%d, v%d, v%d" % (tm, tm, tm + 1))
    return L, regs


def rescale_block(a, prefix):
    tm = A_TM
    a("v_sub_f32 v%d, v%d, v%d" % (tm + 1, tm, A_M))
    a("v_cmp_gt_f32 vcc, v%d, s%d" % (tm + 1, AS_THR))
    lbl = a.uid(prefix + "_nors")
    a("s_cbranch_vccz %s" % lbl)
    a.nop(40)
    a("v_max_f32 v%d, v%d, v%d" % (tm, tm, A_M))
    a("v_sub_f32 v%d, v%d, v%d" % (tm + 1, A_M, tm))
    a("v_exp_f32 v%d, v%d" % (tm + 1, tm + 1))
    a("v_mov_b32 v%d, v%d" % (A_M, tm))
    a("v_mul_f32 v%d, v%d, v%d" % (A_L, tm + 1, A_L))
    for i in range(64):
        a("v_mul_f32 v%d, v%d, v%d" % (A_O + i, tm + 1, A_O + i))
    a("s_nop 1")
    a.label(lbl)


def exp_part(regs16, sub, acc_first):
    L = []
    a = L.append
    tm = A_TM + 2
    for r in regs16:
        a("v_sub_f32 v%d, v%d, v%d" % (r, r, A_M))
    for r in regs16:
        a("v_exp_f32 v%d, v%d" % (r, r))
    a("v_add_f32 v%d, v%d, v%d" % (tm, regs16[0], regs16[1]))
    a("v_add_f32 v%d, v%d, v%d" % (tm + 1, regs16[2], regs16[3]))
    for j in range(4, 16, 2):
        a("v_add_f32 v%d, v%d, v%d" % (tm, tm, regs16[j]))
        a("v_add_f32 v%d, v%d, v%d" % (tm + 1, tm + 1, regs16[j + 1]))
    for j in range(8):
        a("v_cvt_pk_bf16_f32 v%d, v%d, v%d" % (A_P + 8 * sub + j, regs16[2 * j], regs16[2 * j + 1]))
    a("v_add_f32 v%d, v%d, v%d" % (tm, tm, tm + 1))
    a("v_add_f32 v%d, v%d, v%d" % (A_L, A_L, tm))
    return L


def tile2(a, j_par, masked, prefix, do_qk_next=True, dma=True):
    a.wait(vm=0)
    a("s_barrier")
    if dma == "v":
        emit(a, dma_v(1 - j_par))
    elif dma:
        emit(a, dma_k(j_par) + dma_v(1 - j_par))
    head, regs = softmax_head(a, j_par, masked, prefix)
    emit(a, head)
    rescale_block(a, prefix)
    qk = qk_list(1 - j_par, 1 - j_par) if do_qk_next else []
    e0 = exp_part(regs[:16], 0, True)
    e1 = exp_part(regs[16:], 1, False)
    emit(a, spread(e0, qk[:8], 0.0, 0.95))
    emit(a, spread(e1, qk[8:] , 0.0, 0.95))
    a("s_nop 1")
    emit(a, [x for g in pv_list(j_par, [0, 1, 2, 3]) for x in g])


def gen_aattn2_role(a, prefix, ws_sgpr, head_sgpr, tp_sgpr):
    a.c("A-attention role v2")
    a("s_mov_b32 s%d, s%d" % (AS_H, head_sgpr))
    a("s_mov_b32 s%d, s%d" % (AS_TMP + 6, tp_sgpr))
    a_setup(a, ws_sgpr)
    T = AS_TMP
    for half in range(2):
        lp, lm = "%s_h%d_loop" % (prefix, half), "%s_h%d_mask" % (prefix, half)
        if half == 0:
            a("s_mov_b32 s%d, s%d" % (AS_T, T + 6))
        else:
            a("s_sub_u32 s%d, 15, s%d" % (AS_T, T + 6))
            a("s_waitcnt vmcnt(0)")
            a("s_barrier")
        a("s_lshl_b32 s%d, s%d, 19" % (T, AS_H))
        a("s_lshl_b32 s%d, s%d, 7" % (T + 1, AS_T))
        a("s_lshl_b32 s%d, s%d, 5" % (T + 2, AS_W))
        a("s_add_u32 s%d, s%d, s%d" % (T + 1, T + 1, T + 2))
        a("s_lshl_b32 s%d, s%d, 8" % (T + 3, T + 1))
        a("s_add_u32 s%d, s%d, s%d" % (T + 3, T + 3, T))
        a("v_and_b32 v%d, 31, v%d" % (A_T, A_LANE))
        a("v_lshlrev_b32 v%d, 8, v%d" % (A_T + 1, A_T))
        a("v_lshrrev_b32 v%d, 5, v%d" % (A_T + 2, A_LANE))
        a("v_lshlrev_b32 v%d, 4, v%d" % (A_T + 3, A_T + 2))
        a("v_add_u32 v%d, v%d, v%d" % (A_T + 1, A_T + 1, A_T + 3))
        for s in range(8):
            a("buffer_load_dwordx4 %s, v%d, s[%d:%d], s%d offen offset:%d" % (vr(A_Q + 4 * s, 4), A_T + 1, AS_SRD, AS_SRD + 3, T + 3, 32 * s))
        a("v_add_u32 v%d, s%d, v%d" % (A_REL, T + 1, A_T))
        a("v_lshlrev_b32 v%d, 2, v%d" % (A_T + 3, A_T + 2))
        a("v_sub_u32 v%d, v%d, v%d" % (A_REL, A_REL, A_T + 3))
        a("s_lshl_b32 s%d, s%d, 12" % (T + 4, AS_W))
        a("s_add_u32 s%d, s%d, s%d" % (T + 4, T + 4, T))
        a("s_add_u32 s%d, s%d, 0x%x" % (AS_KCUR, T + 4, WS_KA))
        a("s_add_u32 s%d, s%d, 0x%x" % (AS_VCUR, T + 4, WS_VA))
        emit(a, dma_k(0) + dma_k(1) + dma_v(0))
        a("v_mov_b32 v%d, 0xff800000" % A_M)
        a("v_mov_b32 v%d, 0" % A_L)
        for i in range(64):
            a("v_mov_b32 v%d, 0" % (A_O + i))
        a.wait(vm=0)
        a("s_barrier")
        emit(a, [x for g in qk_list(0, 0) for x in g])
        a.nop(16)
        a("s_lshl_b32 s%d, s%d, 1" % (AS_NT, AS_T))
        a("s_mov_b32 s%d, 0" % AS_J)
        a("s_cmp_ge_u32 s%d, s%d" % (AS_J, AS_NT))
        a("s_cbranch_scc1 %s" % lm)
        a.label(lp)
        for par in range(2):
            tile2(a, par, False, prefix)
        a("s_add_u32 s%d, s%d, 2" % (AS_J, AS_J))
        a("s_cmp_lt_u32 s%d, s%d" % (AS_J, AS_NT))
        a("s_cbranch_scc1 %s" % lp)
        a.label(lm)
        a("s_lshl_b32 s%d, s%d, 7" % (AS_TILEBASE, AS_T))
        a("v_subrev_u32 v%d, s%d, v%d" % (A_REL, AS_TILEBASE, A_REL))
        tile2(a, 0, True, prefix, do_qk_next=True, dma="v")
        a("v_subrev_u32 v%d, 64, v%d" % (A_REL, A_REL))
        tile2(a, 1, True, prefix, do_qk_next=False, dma=False)
        a.nop(20)
        tm = A_TM
        a("v_mov_b32 v%d, v%d" % (tm, A_L))
        a("v_mov_b32 v%d, v%d" % (tm + 1, A_L))
        a("s_nop 1")
        a("v_permlane32_swap_b32 v%d, v%d" % (tm, tm + 1))
        a("v_add_f32 v%d, v%d, v%d" % (tm, tm, tm + 1))
        a("v_rcp_f32 v%d, v%d" % (tm, tm))
        a("v_and_b32 v%d, 31, v%d" % (A_T, A_LANE))
        a("v_lshlrev_b32 v%d, 13, v%d" % (A_T + 1, A_T))
        a("v_lshrrev_b32 v%d, 5, v%d" % (A_T + 2, A_LANE))
        a("v_lshlrev_b32 v%d, 4, v%d" % (A_T + 2, A_T + 2))
        a("v_add_u32 v%d, v%d, v%d" % (A_OUT, A_T + 1, A_T + 2))
        a("s_lshl_b32 s%d, s%d, 7" % (T + 1, AS_T))
        a("s_lshl_b32 s%d, s%d, 5" % (T + 2, AS_W))
        a("s_add_u32 s%d, s%d, s%d" % (T + 1, T + 1, T + 2))
        a("s_lshl_b32 s%d, s%d, 13" % (T + 1, T + 1))
        a("s_lshl_b32 s%d, s%d, 8" % (T + 2, AS_H))
        a("s_add_u32 s%d, s%d, s%d" % (T + 1, T + 1, T + 2))
        a("s_add_u32 s%d, s%d, 0x%x" % (T + 1, T + 1, WS_CTX))
        k = 0
        for db in range(4):
            for pr in range(2):
                r = O(db) + 8 * pr
                t0 = A_S0 + 4 * (k % 2)
                k += 1
                for j in range(8):
                    a("v_mul_f32 v%d, v%d, v%d" % (r + j, tm, r + j))
                a("v_cvt_pk_bf16_f32 v%d, v%d, v%d" % (t0, r, r + 1))
                a("v_cvt_pk_bf16_f32 v%d, v%d, v%d" % (t0 + 1, r + 2, r + 3))
                a("v_cvt_pk_bf16_f32 v%d, v%d, v%d" % (t0 + 2, r + 4, r + 5))
                a("v_cvt_pk_bf16_f32 v%d, v%d, v%d" % (t0 + 3, r + 6, r + 7))
                a("s_nop 1")
                a("v_permlane32_swap_b32 v%d, v%d" % (t0, t0 + 2))
                a("v_permlane32_swap_b32 v%d, v%d" % (t0 + 1, t0 + 3))
                a("buffer_store_dwordx4 %s, v%d, s[%d:%d], s%d offen offset:%d"
                  % (vr(t0, 4), A_OUT, AS_SRD, AS_SRD + 3, T + 1, 64 * db + 32 * pr))
    a("s_waitcnt vmcnt(0)")
```

```python
from asmlib import *

BK = 32

V_LANE = 1
V_T = 2
V_WOFF = 10
V_XOFF = 11
V_WRD = 12
V_XRD = 14
V_OUT = 16
V_ST0 = 20
V_FR = 28

S_SRDA, S_SRDB, S_SRDC = 4, 8, 12
S_WG, S_W, S_WN, S_WM = 16, 17, 18, 19
S_R = 20
S_ACUR, S_BCUR = 21, 22
S_C0, S_C1 = 23, 24
S_SCALE = 25
S_LDSW, S_LDSX = 26, 27
S_T0, S_T1 = 28, 29
S_P = 30
S_PTR = 40


class Cfg:
    def __init__(self, BN=128, BM=128, S=4, acc=64):
        self.BN, self.BM, self.S = BN, BM, S
        self.TN, self.TM = BN // 64, BM // 64
        self.WBYTES = BK * 2 * BN
        self.XBYTES = BM * 2 * BK
        self.STAGE = self.WBYTES + self.XBYTES
        self.w_rows_per_instr = 1024 // (2 * BN)
        self.w_instr_per_wave = (BK // self.w_rows_per_instr) // 4
        self.x_rows_per_instr = 1024 // (2 * BK)
        self.x_instr_per_wave = (BM // self.x_rows_per_instr) // 4
        self.n_dma = self.w_instr_per_wave + self.x_instr_per_wave
        self.acc0 = acc

    def acc(self, tn, tm):
        return self.acc0 + (tn * self.TM + tm) * 16


def g2_setup(a, c, lda, ldb, ldc_row):
    a.c("gemm2 setup")
    L, t = V_LANE, V_T
    a("v_and_b32 v%d, 63, v0" % L)
    a("v_lshrrev_b32 v%d, 6, v0" % t)
    a("s_nop 0")
    a("v_readfirstlane_b32 s%d, v%d" % (S_W, t))
    a("s_nop 3")
    a("s_and_b32 s%d, s%d, 1" % (S_WN, S_W))
    a("s_lshr_b32 s%d, s%d, 1" % (S_WM, S_W))
    a("s_mul_i32 s%d, s%d, %d" % (S_LDSW, S_W, c.w_instr_per_wave * 1024))
    a("s_mul_i32 s%d, s%d, %d" % (S_LDSX, S_W, c.x_instr_per_wave * 1024))
    a("s_add_u32 s%d, s%d, %d" % (S_LDSX, S_LDSX, c.WBYTES))
    CW = c.BN // 8
    lg = {16: 4, 8: 3}[CW]
    a("v_lshrrev_b32 v%d, %d, v%d" % (t, lg, L))
    a("v_and_b32 v%d, %d, v%d" % (t + 1, CW - 1, L))
    if c.BN == 128:
        a("v_and_b32 v%d, 3, v%d" % (t + 2, t))
        a("v_lshlrev_b32 v%d, 2, v%d" % (t + 2, t + 2))
    else:
        a("v_bfe_u32 v%d, v%d, 1, 1" % (t + 2, t))
        a("v_lshlrev_b32 v%d, 2, v%d" % (t + 2, t + 2))
    a("v_xor_b32 v%d, v%d, v%d" % (t + 1, t + 1, t + 2))
    a("v_lshlrev_b32 v%d, 4, v%d" % (t + 1, t + 1))
    a("s_mov_b32 s%d, %d" % (S_T0, ldb))
    a("v_mul_lo_u32 v%d, v%d, s%d" % (t + 2, t, S_T0))
    a("v_add_u32 v%d, v%d, v%d" % (V_WOFF, t + 1, t + 2))
    g2_setup_xoff(a, lda)
    a("v_lshrrev_b32 v%d, 5, v%d" % (t, L))
    a("v_bfe_u32 v%d, v%d, 4, 1" % (t + 1, L))
    a("v_bfe_u32 v%d, v%d, 2, 2" % (t + 2, L))
    a("v_and_b32 v%d, 3, v%d" % (t + 3, L))
    a("v_lshlrev_b32 v%d, 3, v%d" % (t + 4, t))
    a("v_add_u32 v%d, v%d, v%d" % (t + 4, t + 4, t + 2))
    a("s_mov_b32 s%d, %d" % (S_T0, 2 * c.BN))
    a("v_mul_lo_u32 v%d, v%d, s%d" % (t + 4, t + 4, S_T0))
    a("v_lshrrev_b32 v%d, 1, v%d" % (t + 5, t + 3))
    a("v_lshlrev_b32 v%d, 1, v%d" % (t + 6, t + 1))
    a("v_add_u32 v%d, v%d, v%d" % (t + 5, t + 5, t + 6))
    a("s_mul_i32 s%d, s%d, %d" % (S_T0, S_WN, c.BN // 16))
    a("v_add_u32 v%d, s%d, v%d" % (t + 5, S_T0, t + 5))
    if c.BN == 128:
        a("v_lshlrev_b32 v%d, 2, v%d" % (t + 6, t + 2))
    else:
        a("v_lshrrev_b32 v%d, 1, v%d" % (t + 6, t + 2))
        a("v_lshlrev_b32 v%d, 2, v%d" % (t + 6, t + 6))
    a("v_and_b32 v%d, 1, v%d" % (t + 3, t + 3))
    a("v_lshlrev_b32 v%d, 3, v%d" % (t + 3, t + 3))
    a("v_add_u32 v%d, v%d, v%d" % (t + 4, t + 4, t + 3))
    for tn in range(c.TN):
        a("v_add_u32 v%d, %d, v%d" % (t + 7, 4 * tn, t + 5))
        a("v_xor_b32 v%d, v%d, v%d" % (t + 7, t + 7, t + 6))
        a("v_lshlrev_b32 v%d, 4, v%d" % (t + 7, t + 7))
        a("v_add_u32 v%d, v%d, v%d" % (V_WRD + tn, t + 4, t + 7))
    a("v_and_b32 v%d, 31, v%d" % (t + 1, L))
    a("s_mul_i32 s%d, s%d, %d" % (S_T0, S_WM, c.BM // 2))
    a("v_add_u32 v%d, s%d, v%d" % (t + 2, S_T0, t + 1))
    a("v_lshlrev_b32 v%d, 6, v%d" % (t + 2, t + 2))
    a("v_add_u32 v%d, %d, v%d" % (t + 2, c.WBYTES, t + 2))
    a("v_bfe_u32 v%d, v%d, 2, 2" % (t + 3, L))
    for ks in range(2):
        a("v_add_u32 v%d, %d, v%d" % (t + 4, 2 * ks, t))
        a("v_xor_b32 v%d, v%d, v%d" % (t + 4, t + 4, t + 3))
        a("v_lshlrev_b32 v%d, 4, v%d" % (t + 4, t + 4))
        a("v_add_u32 v%d, v%d, v%d" % (V_XRD + ks, t + 2, t + 4))
    a("s_mov_b32 s%d, %d" % (S_T0, ldc_row))
    a("v_mul_lo_u32 v%d, v%d, s%d" % (t + 2, t + 1, S_T0))
    a("v_lshlrev_b32 v%d, 4, v%d" % (t + 3, t))
    a("v_add_u32 v%d, v%d, v%d" % (V_OUT, t + 2, t + 3))


def g2_setup_xoff(a, lda):
    L, t = V_LANE, V_T
    a("v_lshrrev_b32 v%d, 2, v%d" % (t + 3, L))
    a("v_and_b32 v%d, 3, v%d" % (t + 1, L))
    a("v_bfe_u32 v%d, v%d, 4, 2" % (t + 2, L))
    a("v_xor_b32 v%d, v%d, v%d" % (t + 1, t + 1, t + 2))
    a("v_lshlrev_b32 v%d, 4, v%d" % (t + 1, t + 1))
    a("s_mov_b32 s%d, %d" % (S_T0, lda))
    a("v_mul_lo_u32 v%d, v%d, s%d" % (t + 2, t + 3, S_T0))
    a("v_add_u32 v%d, v%d, v%d" % (V_XOFF, t + 1, t + 2))


def g2_dma(a, c, stage, lda, ldb):
    base = stage * c.STAGE
    for i in range(c.w_instr_per_wave):
        a("s_add_u32 m0, s%d, %d" % (S_LDSW, base + i * 1024))
        a("s_add_u32 s%d, s%d, %d" % (S_T0, S_BCUR, i * c.w_rows_per_instr * ldb))
        a("buffer_load_dwordx4 v%d, s[%d:%d], s%d offen lds" % (V_WOFF, S_SRDB, S_SRDB + 3, S_T0))
    for i in range(c.x_instr_per_wave):
        a("s_add_u32 m0, s%d, %d" % (S_LDSX, base + i * 1024))
        a("s_add_u32 s%d, s%d, %d" % (S_T0, S_ACUR, i * c.x_rows_per_instr * lda))
        a("buffer_load_dwordx4 v%d, s[%d:%d], s%d offen lds" % (V_XOFF, S_SRDA, S_SRDA + 3, S_T0))
    a("s_add_u32 s%d, s%d, %d" % (S_BCUR, S_BCUR, BK * ldb))
    a("s_add_u32 s%d, s%d, %d" % (S_ACUR, S_ACUR, BK * 2))


def g2_reads(a, c, stage, ks, fset):
    base = stage * c.STAGE
    w0 = V_FR + 16 * fset
    x0 = w0 + 4 * c.TN
    for tn in range(c.TN):
        for t in range(2):
            a("ds_read_b64_tr_b16 %s, v%d offset:%d" % (vr(w0 + 4 * tn + 2 * t, 2), V_WRD + tn, base + (16 * ks + 4 * t) * 2 * c.BN))
    for tm in range(c.TM):
        a("ds_read_b128 %s, v%d offset:%d" % (vr(x0 + 4 * tm, 4), V_XRD + ks, base + tm * 32 * 64))


def g2_nreads(c):
    return 2 * c.TN + c.TM


def g2_mfmas(a, c, fset, zero_c=False):
    w0 = V_FR + 16 * fset
    x0 = w0 + 4 * c.TN
    for tn in range(c.TN):
        for tm in range(c.TM):
            d = c.acc(tn, tm)
            cc = "0" if zero_c else vr(d, 16)
            a("v_mfma_f32_32x32x16_bf16 %s, %s, %s, %s" % (vr(d, 16), vr(w0 + 4 * tn, 4), vr(x0 + 4 * tm, 4), cc))


def g2_iter(a, c, stage, vm_wait, dma, first=False):
    a.wait(vm=vm_wait)
    a("s_barrier")
    g2_reads(a, c, stage, 0, 0)
    g2_reads(a, c, stage, 1, 1)
    if dma is not None:
        dma()
    a.wait(lgkm=g2_nreads(c))
    g2_mfmas(a, c, 0, zero_c=first)
    a.wait(lgkm=0)
    g2_mfmas(a, c, 1)


def g2_epilogue_store(a, c, use_scale=True):
    a.nop(20)
    k = 0
    for tm in range(c.TM):
        soff = S_C0 if tm == 0 else S_C1
        for tn in range(c.TN):
            base = c.acc(tn, tm)
            for pr in range(2):
                r = base + 8 * pr
                t0 = V_ST0 + 4 * (k % 2)
                k += 1
                if use_scale:
                    for j in range(8):
                        a("v_mul_f32 v%d, s%d, v%d" % (r + j, S_SCALE, r + j))
                a("v_cvt_pk_bf16_f32 v%d, v%d, v%d" % (t0, r, r + 1))
                a("v_cvt_pk_bf16_f32 v%d, v%d, v%d" % (t0 + 1, r + 2, r + 3))
                a("v_cvt_pk_bf16_f32 v%d, v%d, v%d" % (t0 + 2, r + 4, r + 5))
                a("v_cvt_pk_bf16_f32 v%d, v%d, v%d" % (t0 + 3, r + 6, r + 7))
                a("s_nop 1")
                a("v_permlane32_swap_b32 v%d, v%d" % (t0, t0 + 2))
                a("v_permlane32_swap_b32 v%d, v%d" % (t0 + 1, t0 + 3))
                a("buffer_store_dwordx4 %s, v%d, s[%d:%d], s%d offen offset:%d"
                  % (vr(t0, 4), V_OUT, S_SRDC, S_SRDC + 3, soff, 64 * tn + 32 * pr))
    return 2 * c.TN * c.TM


def g2_iterU(a, c, stage0, U, vm_wait, dmas, first=False):
    a.wait(vm=vm_wait)
    a("s_barrier")
    seq = [(st, ks) for st in range(stage0, stage0 + U) for ks in range(2)]
    nr = g2_nreads(c)
    g2_reads(a, c, seq[0][0], seq[0][1], 0)
    g2_reads(a, c, seq[1][0], seq[1][1], 1)
    for d in dmas:
        d()
    for i, (st, ks) in enumerate(seq):
        a.wait(lgkm=nr if i + 1 < len(seq) else 0)
        g2_mfmas(a, c, i % 2, zero_c=(first and i == 0))
        if i + 2 < len(seq):
            g2_reads(a, c, seq[i + 2][0], seq[i + 2][1], i % 2)
```

```python
from asmlib import *
from aattn2 import *
def gen(name="a_kernel"):
    a = Asm()
    a("s_cmp_ge_u32 s2, 256")
    a("s_cbranch_scc1 %s_end" % name)
    a("s_and_b32 s33, s2, 7")
    a("s_lshr_b32 s34, s2, 3")
    a("s_lshl_b32 s30, s33, 2")
    a("s_lshr_b32 s35, s34, 3")
    a("s_add_u32 s30, s30, s35")
    a("s_and_b32 s31, s34, 7")
    a("s_load_dwordx2 s[40:41], s[0:1], 112")
    a("s_waitcnt lgkmcnt(0)")
    gen_aattn2_role(a, name, 40, 30, 31)
    a.label("%s_end" % name)
    a("s_endpgm")
    return kernel_head(name) + a.text() + kernel_desc(name, A2_NVGPR, 64)
if __name__ == "__main__":
    head = open("gated_mix__compressed_kv_cla__grouped_kv_mqa__prompt.s.ref").read().split("; Override")[0]
    src = head + "; @launch kernel=a_kernel grid=(256,1,1) block=(256,1,1) lds=65536\n" + '.amdgcn_target "amdgcn-amd-amdhsa--gfx950"\n' + gen()
    open("a_test.s", "w").write(src)
```

```python
import re
from asmlib import *
from gen_l1 import gen_l1
from battn_role import gen_battn_role, B_NVGPR
def gen_l1b(name="l1_kernel", round_scores=True):
    g = gen_l1(name)
    body = g.split(name + ":\n", 1)[1]
    body = body.split(".section .rodata")[0]
    a = Asm()
    a("s_cmp_ge_u32 s2, 512")
    a("s_cbranch_scc1 %s_end" % name)
    a("s_cmp_ge_u32 s2, 256")
    a("s_cbranch_scc1 %s_brole" % name)
    a.raw(body.replace("  s_endpgm\n", "  s_endpgm\n", 1).rstrip("\n"))
    a.label("%s_brole" % name)
    a("s_load_dwordx2 s[40:41], s[0:1], 112")
    a("s_sub_u32 s30, s2, 256")
    a("s_waitcnt lgkmcnt(0)")
    gen_battn_role(a, name, 40, 30, round_scores=round_scores)
    a("s_endpgm")
    return kernel_head(name) + a.text() + kernel_desc(name, B_NVGPR, 64)
```

```python
from asmlib import *
from gemm2 import *
from battn_role import WS_OB, WS_G
from aattn_role import WS_CTX

def gen_l3b(name="l3_kernel"):
    c = Cfg(BN=64, BM=64, S=8, acc=64)
    cB = Cfg(BN=64, BM=64, S=8, acc=80)
    U = 2
    V_GT = 100
    a = Asm()
    a("s_cmp_ge_u32 s2, 256")
    a("s_cbranch_scc1 %s_end" % name)
    a("s_load_dwordx2 s[%d:%d], s[0:1], 40" % (S_PTR, S_PTR + 1))
    a("s_load_dwordx2 s[%d:%d], s[0:1], 80" % (S_PTR + 2, S_PTR + 3))
    a("s_load_dwordx2 s[%d:%d], s[0:1], 96" % (S_PTR + 4, S_PTR + 5))
    a("s_load_dwordx2 s[%d:%d], s[0:1], 112" % (S_PTR + 10, S_PTR + 11))
    a("s_waitcnt lgkmcnt(0)")
    a("s_mov_b32 s%d, s2" % S_WG)
    P = S_P
    a("s_and_b32 s%d, s%d, 7" % (P + 2, S_WG))
    a("s_lshr_b32 s%d, s%d, 3" % (P + 3, S_WG))
    a("s_and_b32 s%d, s%d, 7" % (P + 1, P + 3))
    a("s_lshr_b32 s%d, s%d, 3" % (P + 3, P + 3))
    a("s_lshl_b32 s%d, s%d, 3" % (P + 3, P + 3))
    a("s_add_u32 s%d, s%d, s%d" % (P, P + 2, P + 3))
    LDA1, LDA2, LDB = 8192, 1024, 1024
    g2_setup(a, c, LDA1, LDB, 1024)
    a("s_add_u32 s%d, s%d, 0x%x" % (S_T0, S_PTR + 10, WS_CTX))
    a("s_addc_u32 s%d, s%d, 0" % (S_T1, S_PTR + 11))
    a.srd(S_SRDA, "s%d" % S_T0, "s%d" % S_T1, 0x1000000)
    a.srd(S_SRDB, "s%d" % S_PTR, "s%d" % (S_PTR + 1), 0x400000)
    a.srd(S_SRDC, "s%d" % (S_PTR + 4), "s%d" % (S_PTR + 5), 0x200000)
    def set_src(lda):
        a("s_lshl_b32 s%d, s%d, 6" % (S_T0, P))
        a("s_lshl_b32 s%d, s%d, 4" % (S_ACUR, S_W))
        a("s_add_u32 s%d, s%d, s%d" % (S_ACUR, S_ACUR, S_T0))
        a("s_mul_i32 s%d, s%d, %d" % (S_ACUR, S_ACUR, lda))
        a("s_lshl_b32 s%d, s%d, 13" % (S_BCUR, S_W))
        a("s_lshl_b32 s%d, s%d, 7" % (S_T0, P + 1))
        a("s_add_u32 s%d, s%d, s%d" % (S_BCUR, S_BCUR, S_T0))
    set_src(LDA1)
    S = c.S
    nd = c.n_dma
    for st in range(S - U):
        g2_dma(a, c, st, LDA1, LDB)
    N1, N2 = 128 // U, 16 // U
    NT = N1 + N2
    per_ring = S // U
    state = {"lda": LDA1}
    def switch_to_seg2():
        g2_setup_xoff(a, LDA2)
        a("s_add_u32 s%d, s%d, 0x%x" % (S_T0, S_PTR + 10, WS_OB))
        a("s_addc_u32 s%d, s%d, 0" % (S_T1, S_PTR + 11))
        a.srd(S_SRDA, "s%d" % S_T0, "s%d" % S_T1, 0x200000)
        a.srd(S_SRDB, "s%d" % (S_PTR + 2), "s%d" % (S_PTR + 3), 0x80000)
        set_src(LDA2)
    vmw = (S // U - 2) * U * nd
    def emit(it, cfg, lda, first=False, pre=None, more=True):
        st0 = (it % per_ring) * U
        tgt = ((it + per_ring - 1) % per_ring) * U
        dm = []
        if more:
            if pre: dm.append(pre)
            for j in range(U):
                dm.append(lambda j=j: g2_dma(a, c, tgt + j, lda, LDB))
        g2_iterU(a, cfg, st0, U, vmw if more else 0, dm, first=first)
    for it in range(per_ring):
        emit(it, c, LDA1, first=(it == 0))
    nmid = N1 // per_ring - 2
    a("s_mov_b32 s%d, %d" % (S_R, nmid))
    a.label(name + "_mid")
    for it in range(per_ring):
        emit(it, c, LDA1)
    a("s_sub_u32 s%d, s%d, 1" % (S_R, S_R))
    a("s_cmp_lg_u32 s%d, 0" % S_R)
    a("s_cbranch_scc1 %s_mid" % name)
    lookahead = per_ring - 1
    for it in range(per_ring):
        if it == per_ring - lookahead:
            emit(it, c, LDA2, pre=switch_to_seg2)
        elif it > per_ring - lookahead:
            emit(it, c, LDA2)
        else:
            emit(it, c, LDA1)
    for it in range(N2):
        more = it + lookahead < N2
        emit(it, cB, LDA2, first=(it == 0), more=more)
    a("s_lshl_b32 s%d, s%d, 6" % (S_T0, P))
    a("s_lshl_b32 s%d, s%d, 5" % (S_T1, S_WM))
    a("s_add_u32 s%d, s%d, s%d" % (S_T0, S_T0, S_T1))
    a("s_lshl_b32 s%d, s%d, 2" % (S_T0, S_T0))
    a("s_add_u32 s%d, s%d, 0x%x" % (S_T0, S_T0, WS_G))
    a.srd(S_SRDA, "s%d" % (S_PTR + 10), "s%d" % (S_PTR + 11), 0x4600000)
    a("v_and_b32 v%d, 31, v%d" % (V_T, V_LANE))
    a("v_lshlrev_b32 v%d, 2, v%d" % (V_T, V_T))
    a("buffer_load_dword v%d, v%d, s[%d:%d], s%d offen" % (V_GT, V_T, S_SRDA, S_SRDA + 3, S_T0))
    a("s_lshl_b32 s%d, s%d, 6" % (S_C0, P))
    a("s_lshl_b32 s%d, s%d, 5" % (S_T0, S_WM))
    a("s_add_u32 s%d, s%d, s%d" % (S_C0, S_C0, S_T0))
    a("s_lshl_b32 s%d, s%d, 10" % (S_C0, S_C0))
    a("s_lshl_b32 s%d, s%d, 7" % (S_T0, P + 1))
    a("s_add_u32 s%d, s%d, s%d" % (S_C0, S_C0, S_T0))
    a("s_lshl_b32 s%d, s%d, 6" % (S_T0, S_WN))
    a("s_add_u32 s%d, s%d, s%d" % (S_C0, S_C0, S_T0))
    a("s_waitcnt vmcnt(0)")
    a("v_sub_f32 v%d, 1.0, v%d" % (V_GT + 1, V_GT))
    a("v_cvt_pk_bf16_f32 v%d, 0, v%d" % (V_GT + 1, V_GT + 1))
    a.nop(20)
    ba, bb = c.acc(0, 0), cB.acc(0, 0)
    for i in range(16):
        a("v_cvt_pk_bf16_f32 v%d, 0, v%d" % (ba + i, ba + i))
        a("v_cvt_pk_bf16_f32 v%d, 0, v%d" % (bb + i, bb + i))
        a("v_mul_f32 v%d, v%d, v%d" % (ba + i, V_GT, ba + i))
        a("v_mul_f32 v%d, v%d, v%d" % (bb + i, V_GT + 1, bb + i))
        a("v_cvt_pk_bf16_f32 v%d, 0, v%d" % (ba + i, ba + i))
        a("v_cvt_pk_bf16_f32 v%d, 0, v%d" % (bb + i, bb + i))
        a("v_add_f32 v%d, v%d, v%d" % (ba + i, ba + i, bb + i))
    g2_epilogue_store(a, c, use_scale=False)
    a("s_waitcnt vmcnt(0)")
    a.label("%s_end" % name)
    a("s_endpgm")
    return kernel_head(name) + a.text() + kernel_desc(name, 104, 64)
```

```python
import sys
from asmlib import *
from gen_l0 import gen_l0
from gen_l1b import gen_l1b
from gen_l3b import gen_l3b as gen_l3
from gen_btest import gen as gen_b
from gen_atest2 import gen as gen_a2
def build(path, round_scores=True):
    head = open("gated_mix__compressed_kv_cla__grouped_kv_mqa__prompt.s.ref").read().split("; Override")[0]
    src = head
    src += "; @launch kernel=l0_kernel grid=(80,1,1) block=(256,1,1) lds=65536\n"
    src += "; @launch kernel=l1_kernel grid=(512,1,1) block=(256,1,1) lds=65536\n"
    src += "; @launch kernel=a_kernel grid=(256,1,1) block=(320,1,1) lds=65536\n"
    src += "; @launch kernel=l3_kernel grid=(256,1,1) block=(256,1,1) lds=65536\n"
    src += '.amdgcn_target "amdgcn-amd-amdhsa--gfx950"\n'
    src += gen_l0() + gen_l1b(round_scores=round_scores) + gen_a2() + gen_l3()
    open(path, "w").write(src)
    return len(src)
if __name__ == "__main__":
    out = sys.argv[1] if len(sys.argv) > 1 else "full_v1.s"
    rs = not (len(sys.argv) > 2 and sys.argv[2] == "noround")
    print(build(out, rs))
```

```python
from asmlib import *
import aattn_role as R
from aattn_role import (WS_QA, WS_KA, WS_VA, WS_CTX, A_LANE, A_T, A_Q, A_O, A_KRD, A_VRD, A_KOFF, A_VOFF, A_M, A_L,
                        A_REL, A_NEG, A_TM, A_OUT, AS_SRD, AS_W, AS_H, AS_T, AS_KCUR, AS_VCUR, AS_LDSK, AS_LDSV,
                        AS_J, AS_NT, AS_TILEBASE, AS_TMP, AS_THR, STAGE, VOFF_ST, O, a_setup)
from battn_role import merge

A_S0 = 106
A_S1 = 216
A_P = 138
A_KF = 154
A_VF = 170
A2_NVGPR = 248


def S(buf, sub):
    return (A_S0 if buf == 0 else A_S1) + 16 * sub


def dma_k(stage):
    L = []
    base = stage * STAGE
    for i in range(4):
        L += ["s_add_u32 m0, s%d, %d" % (AS_LDSK, base + i * 1024),
              "v_xor_b32 v%d, %d, v%d" % (A_T, 64 * i, A_KOFF),
              "buffer_load_dwordx4 v%d, s[%d:%d], s%d offen lds" % (A_T, AS_SRD, AS_SRD + 3, AS_KCUR),
              "s_add_u32 s%d, s%d, 1024" % (AS_KCUR, AS_KCUR)]
    L.append("s_add_u32 s%d, s%d, %d" % (AS_KCUR, AS_KCUR, 16384 - 4096))
    return L


def dma_v(stage):
    L = []
    base = stage * STAGE
    for i in range(4):
        L += ["s_add_u32 m0, s%d, %d" % (AS_LDSV, base + i * 1024), "s_nop 0",
              "buffer_load_dwordx4 v%d, s[%d:%d], s%d offen lds" % (A_VOFF, AS_SRD, AS_SRD + 3, AS_VCUR),
              "s_add_u32 s%d, s%d, 1024" % (AS_VCUR, AS_VCUR)]
    L.append("s_add_u32 s%d, s%d, %d" % (AS_VCUR, AS_VCUR, 16384 - 4096))
    return L


def qk_list(kstage, sbuf):
    base = kstage * STAGE
    seq = [(sub, s) for sub in range(2) for s in range(8)]
    rd = lambda idx: "ds_read_b128 %s, v%d offset:%d" % (vr(A_KF + 4 * (idx % 4), 4), A_KRD + seq[idx][1], base + seq[idx][0] * 8192)
    groups = []
    pre = [rd(i) for i in range(3)]
    for idx, (sub, s) in enumerate(seq):
        g = []
        if idx == 0:
            g += pre
        if idx + 3 < len(seq):
            g.append(rd(idx + 3))
        g.append("@W%d" % (3 if idx + 3 < len(seq) else len(seq) - 1 - idx))
        c = "0" if s == 0 else vr(S(sbuf, sub), 16)
        g.append("v_mfma_f32_32x32x16_bf16 %s, %s, %s, %s" % (vr(S(sbuf, sub), 16), vr(A_KF + 4 * (idx % 4), 4), vr(A_Q + 4 * s, 4), c))
        groups.append(g)
    return groups


def pv_list(vstage, kslist):
    base = vstage * STAGE
    seq = [(db, ks) for ks in kslist for db in range(4)]
    NS, LA = 8, 7
    def rd(idx):
        db, ks = seq[idx]
        return ["ds_read_b64_tr_b16 %s, v%d offset:%d" % (vr(A_KF + 4 * (idx % NS) + 2 * t, 2), A_VRD + db, base + VOFF_ST + (16 * ks + 8 * t) * 256) for t in range(2)]
    groups = []
    for idx, (db, ks) in enumerate(seq):
        g = []
        if idx == 0:
            for i in range(LA):
                g += rd(i)
        if idx + LA < len(seq):
            g += rd(idx + LA)
        g.append("@W%d" % (2 * LA if idx + LA < len(seq) else 2 * (len(seq) - 1 - idx)))
        g.append("v_mfma_f32_32x32x16_bf16 %s, %s, %s, %s" % (vr(O(db), 16), vr(A_KF + 4 * (idx % NS), 4), vr(A_P + 4 * ks, 4), vr(O(db), 16)))
        groups.append(g)
    return groups


def spread(valu, groups, start=0.0, end=1.0):
    n = len(groups)
    ins = [(start + (end - start) * (i / max(n, 1)), g) for i, g in enumerate(groups)]
    return merge(valu, ins)


def emit(a, lst):
    for s in lst:
        if s.startswith("@W"):
            a("s_waitcnt lgkmcnt(%s)" % s[2:])
        elif s.endswith(":"):
            a.raw(s)
        else:
            a(s)


def softmax_head(a_, sbuf, masked, prefix):
    L = []
    a = L.append
    regs = [S(sbuf, sub) + i for sub in range(2) for i in range(16)]
    if masked:
        for sub in range(2):
            for i in range(16):
                kk = 32 * sub + 8 * (i // 4) + (i % 4)
                a("v_cmp_lt_i32 vcc, v%d, %d" % (A_REL, kk))
                a("s_nop 1")
                a("v_cndmask_b32 v%d, v%d, v%d, vcc" % (regs[16 * sub + i], regs[16 * sub + i], A_NEG))
    tm = A_TM
    a("v_max3_f32 v%d, v%d, v%d, v%d" % (tm, regs[0], regs[1], regs[2]))
    a("v_max3_f32 v%d, v%d, v%d, v%d" % (tm + 1, regs[3], regs[4], regs[5]))
    idx, k = 6, 0
    while idx + 1 < 32:
        d = tm + (k % 2)
        a("v_max3_f32 v%d, v%d, v%d, v%d" % (d, d, regs[idx], regs[idx + 1]))
        idx += 2
        k += 1
    a("v_max_f32 v%d, v%d, v%d" % (tm, tm, tm + 1))
    a("v_mov_b32 v%d, v%d" % (tm + 1, tm))
    a("s_nop 1")
    a("v_permlane32_swap_b32 v%d, v%d" % (tm, tm + 1))
    a("v_max_f32 v%d, v%d, v%d" % (tm, tm, tm + 1))
    return L, regs


def rescale_block(a, prefix):
    tm = A_TM
    a("v_sub_f32 v%d, v%d, v%d" % (tm + 1, tm, A_M))
    a("v_cmp_gt_f32 vcc, v%d, s%d" % (tm + 1, AS_THR))
    lbl = a.uid(prefix + "_nors")
    a("s_cbranch_vccz %s" % lbl)
    a.nop(40)
    a("v_max_f32 v%d, v%d, v%d" % (tm, tm, A_M))
    a("v_sub_f32 v%d, v%d, v%d" % (tm + 1, A_M, tm))
    a("v_exp_f32 v%d, v%d" % (tm + 1, tm + 1))
    a("v_mov_b32 v%d, v%d" % (A_M, tm))
    a("v_mul_f32 v%d, v%d, v%d" % (A_L, tm + 1, A_L))
    for i in range(64):
        a("v_mul_f32 v%d, v%d, v%d" % (A_O + i, tm + 1, A_O + i))
    a("s_nop 1")
    a.label(lbl)


def exp_part(regs16, sub, acc_first):
    L = []
    a = L.append
    tm = A_TM + 2
    for r in regs16:
        a("v_sub_f32 v%d, v%d, v%d" % (r, r, A_M))
    for r in regs16:
        a("v_exp_f32 v%d, v%d" % (r, r))
    a("v_add_f32 v%d, v%d, v%d" % (tm, regs16[0], regs16[1]))
    a("v_add_f32 v%d, v%d, v%d" % (tm + 1, regs16[2], regs16[3]))
    for j in range(4, 16, 2):
        a("v_add_f32 v%d, v%d, v%d" % (tm, tm, regs16[j]))
        a("v_add_f32 v%d, v%d, v%d" % (tm + 1, tm + 1, regs16[j + 1]))
    for j in range(8):
        a("v_cvt_pk_bf16_f32 v%d, v%d, v%d" % (A_P + 8 * sub + j, regs16[2 * j], regs16[2 * j + 1]))
    a("v_add_f32 v%d, v%d, v%d" % (tm, tm, tm + 1))
    a("v_add_f32 v%d, v%d, v%d" % (A_L, A_L, tm))
    return L


def tile2(a, j_par, masked, prefix, do_qk_next=True, dma=True):
    a("s_barrier")
    head, regs = softmax_head(a, j_par, masked, prefix)
    emit(a, head)
    rescale_block(a, prefix)
    qk = qk_list(1 - j_par, 1 - j_par) if do_qk_next else []
    e0 = exp_part(regs[:16], 0, True)
    e1 = exp_part(regs[16:], 1, False)
    emit(a, spread(e0, qk[:8], 0.0, 0.95))
    emit(a, spread(e1, qk[8:] , 0.0, 0.95))
    a("s_nop 1")
    emit(a, [x for g in pv_list(j_par, [0, 1, 2, 3]) for x in g])


def gen_aattn2_role(a, prefix, ws_sgpr, head_sgpr, tp_sgpr):
    a.c("A-attention role v2")
    a("s_mov_b32 s%d, s%d" % (AS_H, head_sgpr))
    a("s_mov_b32 s%d, s%d" % (AS_TMP + 6, tp_sgpr))
    a_setup(a, ws_sgpr)
    T = AS_TMP
    for half in range(2):
        lp, lm = "%s_h%d_loop" % (prefix, half), "%s_h%d_mask" % (prefix, half)
        if half == 0:
            a("s_mov_b32 s%d, s%d" % (AS_T, T + 6))
        else:
            a("s_sub_u32 s%d, 15, s%d" % (AS_T, T + 6))
            a("s_waitcnt vmcnt(0)")
            a("s_barrier")
        a("s_lshl_b32 s%d, s%d, 19" % (T, AS_H))
        a("s_lshl_b32 s%d, s%d, 7" % (T + 1, AS_T))
        a("s_lshl_b32 s%d, s%d, 5" % (T + 2, AS_W))
        a("s_add_u32 s%d, s%d, s%d" % (T + 1, T + 1, T + 2))
        a("s_lshl_b32 s%d, s%d, 8" % (T + 3, T + 1))
        a("s_add_u32 s%d, s%d, s%d" % (T + 3, T + 3, T))
        a("v_and_b32 v%d, 31, v%d" % (A_T, A_LANE))
        a("v_lshlrev_b32 v%d, 8, v%d" % (A_T + 1, A_T))
        a("v_lshrrev_b32 v%d, 5, v%d" % (A_T + 2, A_LANE))
        a("v_lshlrev_b32 v%d, 4, v%d" % (A_T + 3, A_T + 2))
        a("v_add_u32 v%d, v%d, v%d" % (A_T + 1, A_T + 1, A_T + 3))
        for s in range(8):
            a("buffer_load_dwordx4 %s, v%d, s[%d:%d], s%d offen offset:%d" % (vr(A_Q + 4 * s, 4), A_T + 1, AS_SRD, AS_SRD + 3, T + 3, 32 * s))
        a("v_add_u32 v%d, s%d, v%d" % (A_REL, T + 1, A_T))
        a("v_lshlrev_b32 v%d, 2, v%d" % (A_T + 3, A_T + 2))
        a("v_sub_u32 v%d, v%d, v%d" % (A_REL, A_REL, A_T + 3))
        a("s_lshl_b32 s%d, s%d, 12" % (T + 4, AS_W))
        a("s_add_u32 s%d, s%d, s%d" % (T + 4, T + 4, T))
        a("s_add_u32 s%d, s%d, 0x%x" % (AS_KCUR, T + 4, WS_KA))
        a("s_add_u32 s%d, s%d, 0x%x" % (AS_VCUR, T + 4, WS_VA))
        a("v_mov_b32 v%d, 0xff800000" % A_M)
        a("v_mov_b32 v%d, 0" % A_L)
        for i in range(64):
            a("v_mov_b32 v%d, 0" % (A_O + i))
        a.wait(vm=0)
        a("s_barrier")
        emit(a, [x for g in qk_list(0, 0) for x in g])
        a.nop(16)
        a("s_lshl_b32 s%d, s%d, 1" % (AS_NT, AS_T))
        a("s_mov_b32 s%d, 0" % AS_J)
        a("s_cmp_ge_u32 s%d, s%d" % (AS_J, AS_NT))
        a("s_cbranch_scc1 %s" % lm)
        a.label(lp)
        for par in range(2):
            tile2(a, par, False, prefix)
        a("s_add_u32 s%d, s%d, 2" % (AS_J, AS_J))
        a("s_cmp_lt_u32 s%d, s%d" % (AS_J, AS_NT))
        a("s_cbranch_scc1 %s" % lp)
        a.label(lm)
        a("s_lshl_b32 s%d, s%d, 7" % (AS_TILEBASE, AS_T))
        a("v_subrev_u32 v%d, s%d, v%d" % (A_REL, AS_TILEBASE, A_REL))
        tile2(a, 0, True, prefix, do_qk_next=True, dma="v")
        a("v_subrev_u32 v%d, 64, v%d" % (A_REL, A_REL))
        tile2(a, 1, True, prefix, do_qk_next=False, dma=False)
        a.nop(20)
        tm = A_TM
        a("v_mov_b32 v%d, v%d" % (tm, A_L))
        a("v_mov_b32 v%d, v%d" % (tm + 1, A_L))
        a("s_nop 1")
        a("v_permlane32_swap_b32 v%d, v%d" % (tm, tm + 1))
        a("v_add_f32 v%d, v%d, v%d" % (tm, tm, tm + 1))
        a("v_rcp_f32 v%d, v%d" % (tm, tm))
        a("v_and_b32 v%d, 31, v%d" % (A_T, A_LANE))
        a("v_lshlrev_b32 v%d, 13, v%d" % (A_T + 1, A_T))
        a("v_lshrrev_b32 v%d, 5, v%d" % (A_T + 2, A_LANE))
        a("v_lshlrev_b32 v%d, 4, v%d" % (A_T + 2, A_T + 2))
        a("v_add_u32 v%d, v%d, v%d" % (A_OUT, A_T + 1, A_T + 2))
        a("s_lshl_b32 s%d, s%d, 7" % (T + 1, AS_T))
        a("s_lshl_b32 s%d, s%d, 5" % (T + 2, AS_W))
        a("s_add_u32 s%d, s%d, s%d" % (T + 1, T + 1, T + 2))
        a("s_lshl_b32 s%d, s%d, 13" % (T + 1, T + 1))
        a("s_lshl_b32 s%d, s%d, 8" % (T + 2, AS_H))
        a("s_add_u32 s%d, s%d, s%d" % (T + 1, T + 1, T + 2))
        a("s_add_u32 s%d, s%d, 0x%x" % (T + 1, T + 1, WS_CTX))
        k = 0
        for db in range(4):
            for pr in range(2):
                r = O(db) + 8 * pr
                t0 = A_S0 + 4 * (k % 2)
                k += 1
                for j in range(8):
                    a("v_mul_f32 v%d, v%d, v%d" % (r + j, tm, r + j))
                a("v_cvt_pk_bf16_f32 v%d, v%d, v%d" % (t0, r, r + 1))
                a("v_cvt_pk_bf16_f32 v%d, v%d, v%d" % (t0 + 1, r + 2, r + 3))
                a("v_cvt_pk_bf16_f32 v%d, v%d, v%d" % (t0 + 2, r + 4, r + 5))
                a("v_cvt_pk_bf16_f32 v%d, v%d, v%d" % (t0 + 3, r + 6, r + 7))
                a("s_nop 1")
                a("v_permlane32_swap_b32 v%d, v%d" % (t0, t0 + 2))
                a("v_permlane32_swap_b32 v%d, v%d" % (t0 + 1, t0 + 3))
                a("buffer_store_dwordx4 %s, v%d, s[%d:%d], s%d offen offset:%d"
                  % (vr(t0, 4), A_OUT, AS_SRD, AS_SRD + 3, T + 1, 64 * db + 32 * pr))
    a("s_waitcnt vmcnt(0)")


def p_dma(a, kind, stage, cur):
    base = stage * STAGE + (0 if kind == "k" else VOFF_ST)
    for i in range(16):
        a("s_mov_b32 m0, %d" % (base + i * 1024))
        if kind == "k":
            a("v_xor_b32 v%d, %d, v%d" % (A_T, 64 * (i % 4), A_KOFF))
            a("buffer_load_dwordx4 v%d, s[%d:%d], s%d offen lds" % (A_T, AS_SRD, AS_SRD + 3, cur))
        else:
            a("s_nop 0")
            a("buffer_load_dwordx4 v%d, s[%d:%d], s%d offen lds" % (A_VOFF, AS_SRD, AS_SRD + 3, cur))
        a("s_add_u32 s%d, s%d, 1024" % (cur, cur))


def gen_aattn2_producer(a, prefix, ws_sgpr, head_sgpr, tp_sgpr):
    a.c("A-attention DMA producer wave")
    a("s_mov_b32 s%d, s%d" % (AS_H, head_sgpr))
    a("s_mov_b32 s%d, s%d" % (AS_TMP + 6, tp_sgpr))
    a_setup(a, ws_sgpr)
    T = AS_TMP
    for half in range(2):
        lp, lm = "%s_p%d_loop" % (prefix, half), "%s_p%d_mask" % (prefix, half)
        if half == 0:
            a("s_mov_b32 s%d, s%d" % (AS_T, T + 6))
        else:
            a("s_sub_u32 s%d, 15, s%d" % (AS_T, T + 6))
            a("s_waitcnt vmcnt(0)")
            a("s_barrier")
        a("s_lshl_b32 s%d, s%d, 19" % (T, AS_H))
        a("s_add_u32 s%d, s%d, 0x%x" % (AS_KCUR, T, WS_KA))
        a("s_add_u32 s%d, s%d, 0x%x" % (AS_VCUR, T, WS_VA))
        p_dma(a, "k", 0, AS_KCUR); p_dma(a, "k", 1, AS_KCUR); p_dma(a, "v", 0, AS_VCUR)
        a.wait(vm=0)
        a("s_barrier")
        a("s_lshl_b32 s%d, s%d, 1" % (AS_NT, AS_T))
        a("s_mov_b32 s%d, 0" % AS_J)
        a("s_cmp_ge_u32 s%d, s%d" % (AS_J, AS_NT))
        a("s_cbranch_scc1 %s" % lm)
        a.label(lp)
        for par in range(2):
            a.wait(vm=0)
            a("s_barrier")
            p_dma(a, "k", par, AS_KCUR); p_dma(a, "v", 1 - par, AS_VCUR)
        a("s_add_u32 s%d, s%d, 2" % (AS_J, AS_J))
        a("s_cmp_lt_u32 s%d, s%d" % (AS_J, AS_NT))
        a("s_cbranch_scc1 %s" % lp)
        a.label(lm)
        a.wait(vm=0)
        a("s_barrier")
        p_dma(a, "v", 1, AS_VCUR)
        a.wait(vm=0)
        a("s_barrier")
    a("s_waitcnt vmcnt(0)")
```

```python
from asmlib import *
from aattn2 import *
def gen(name="a_kernel"):
    a = Asm()
    a("s_cmp_ge_u32 s2, 256")
    a("s_cbranch_scc1 %s_end" % name)
    a("s_and_b32 s33, s2, 7")
    a("s_lshr_b32 s34, s2, 3")
    a("s_lshl_b32 s30, s33, 2")
    a("s_lshr_b32 s35, s34, 3")
    a("s_add_u32 s30, s30, s35")
    a("s_and_b32 s31, s34, 7")
    a("s_load_dwordx2 s[40:41], s[0:1], 112")
    a("s_waitcnt lgkmcnt(0)")
    a("v_lshrrev_b32 v2, 8, v0")
    a("s_nop 0")
    a("v_readfirstlane_b32 s36, v2")
    a("s_nop 3")
    a("s_cmp_lg_u32 s36, 0")
    a("s_cbranch_scc1 %s_prod" % name)
    gen_aattn2_role(a, name, 40, 30, 31)
    a("s_branch %s_end" % name)
    a.label("%s_prod" % name)
    gen_aattn2_producer(a, name, 40, 30, 31)
    a.label("%s_end" % name)
    a("s_endpgm")
    return kernel_head(name) + a.text() + kernel_desc(name, A2_NVGPR, 64)
if __name__ == "__main__":
    head = open("gated_mix__compressed_kv_cla__grouped_kv_mqa__prompt.s.ref").read().split("; Override")[0]
    src = head + "; @launch kernel=a_kernel grid=(256,1,1) block=(320,1,1) lds=65536\n" + '.amdgcn_target "amdgcn-amd-amdhsa--gfx950"\n' + gen()
    open("a_test.s", "w").write(src)
```
